```python
import torch

def _softmax(x, axis=-1):
    return torch.softmax(x, dim=axis)
def _gelu(x):
    return torch.nn.functional.gelu(x, approximate="tanh")
def _silu(x):
    return torch.nn.functional.silu(x)
def _sigmoid(x):
    return torch.sigmoid(x)
def _layernorm(x, axis=-1, eps=1e-5):
    m = x.mean(dim=axis, keepdim=True)
    v = x.var(dim=axis, keepdim=True, unbiased=False)
    return (x - m) / torch.sqrt(v + eps)
def _scatter_add(tgt, idx, src, axis=0):
    return tgt.clone().index_add_(axis, idx, src)
def _segment_sum(src, seg, n):
    out = torch.zeros((n,) + src.shape[1:], dtype=src.dtype)
    return out.index_add_(0, seg, src)
def _pad(x, pw):
    flat = tuple(v for pair in reversed(pw) for v in pair)
    return torch.nn.functional.pad(x, flat)

kernel_name = 'concat_heads__sliding_block_cached__compressed_kv_cla__decode'

def setup_inputs():

    _w = (lambda a: (lambda t: t.to(torch.bfloat16) if t.is_floating_point() else t)(torch.as_tensor(a)))
    def _A_setup():
        B, Sq, D = 4, 1, 512
        Hq, Hkv, Sk, Dh = 32, 8, 8192, 128
        assert Hq % Hkv == 0, (Hq, Hkv)
        return {
            "x": _w((lambda *s: torch.randn(*s, dtype=torch.bfloat16) * 1.6)(B, Sq, D)),
            "k_cache": _w((lambda *s: torch.randn(*s, dtype=torch.bfloat16) * 1.6)(B, Hkv, Sk, Dh)),
            "v_cache": _w((lambda *s: torch.randn(*s, dtype=torch.bfloat16) * 0.05)(B, Hkv, Sk, Dh)),
            "wq": _w((lambda *s: torch.randn(*s, dtype=torch.bfloat16) * 1.6)(D, Hq * Dh) * (D ** -0.5)),
            "wo": _w((lambda *s: torch.randn(*s, dtype=torch.bfloat16) * 0.05)(Hq * Dh, D) * ((Hq * Dh) ** -0.5)),
        }
    _A_in = _A_setup()

    def _B_setup():
        B, H, Sq, Sk, D, M = 4, 32, 1, 8192, 128, 512
        Dc = 4 * D
        return {
            "x": _w((lambda *s: torch.randn(*s, dtype=torch.bfloat16) * 3.2)(B, Sq, M)),
            "c_kv": _w((lambda *s: torch.randn(*s, dtype=torch.bfloat16) * 0.1)(B, Sk, Dc)),
            "w_q": _w((lambda *s: torch.randn(*s, dtype=torch.bfloat16) * 6.4)(M, H, D) * (M ** -0.5)),
            "w_uk": _w((lambda *s: torch.randn(*s, dtype=torch.bfloat16) * 6.4)(Dc, H, D) * (Dc ** -0.5)),
            "w_uv": _w((lambda *s: torch.randn(*s, dtype=torch.bfloat16) * 0.1)(Dc, H, D) * (Dc ** -0.5)),
            "w_o": _w((lambda *s: torch.randn(*s, dtype=torch.bfloat16) * 0.1)(H, D, M) * ((H * D) ** -0.5)),
        }
    _B_in = _B_setup()

    return {
        "A_x": _A_in["x"],
        "A_k_cache": _A_in["k_cache"],
        "A_v_cache": _A_in["v_cache"],
        "A_wq": _A_in["wq"],
        "A_wo": _A_in["wo"],
        "B_x": _B_in["x"],
        "B_c_kv": _B_in["c_kv"],
        "B_w_q": _B_in["w_q"],
        "B_w_uk": _B_in["w_uk"],
        "B_w_uv": _B_in["w_uv"],
        "B_w_o": _B_in["w_o"],
    }

def reference(A_x, A_k_cache, A_v_cache, A_wq, A_wo, B_x, B_c_kv, B_w_q, B_w_uk, B_w_uv, B_w_o):
    def _A_ref(x, k_cache, v_cache, wq, wo):
        B, Sq, D = x.shape
        Hq, Dh = 32, 128
        Hkv, Sk = k_cache.shape[1], k_cache.shape[2]
        W = min(4096, max(256, Sk // 4))
        rep = Hq // Hkv
        q = (lambda x, *d: x.permute(*d))((x @ wq).reshape(B, Sq, Hq, Dh), 0, 2, 1, 3)
        k = (lambda x, n, axis: torch.repeat_interleave(x, n, dim=axis))(k_cache[:, :, Sk - W:, :], rep, axis=1)
        v = (lambda x, n, axis: torch.repeat_interleave(x, n, dim=axis))(v_cache[:, :, Sk - W:, :], rep, axis=1)
        scores = torch.einsum("bhqd,bhkd->bhqk", q, k) * (Dh ** -0.5)
        p = _softmax(scores, axis=-1)
        o = torch.einsum("bhqk,bhkd->bhqd", p, v)
        return (lambda x, *d: x.permute(*d))(o, 0, 2, 1, 3).reshape(B, Sq, Hq * Dh) @ wo

    def _B_ref(x, c_kv, w_q, w_uk, w_uv, w_o):
        B, Sq, M = x.shape[0], x.shape[1], x.shape[2]
        Sk = c_kv.shape[1]
        H, D = w_q.shape[1], w_q.shape[2]
        q = torch.einsum("bqm,mhd->bhqd", x, w_q)
        k = torch.einsum("bkc,chd->bhkd", c_kv, w_uk)
        v = torch.einsum("bkc,chd->bhkd", c_kv, w_uv)
        scores = torch.einsum("bhqd,bhkd->bhqk", q, k) * (D ** -0.5)
        off = Sk - Sq
        qi = torch.arange(Sq)[:, None]
        kj = torch.arange(Sk)[None, :]
        cmask = kj <= (qi + off)
        scores = torch.where(cmask[None, None], scores, -1e9)
        p = _softmax(scores, axis=-1)
        ctx = torch.einsum("bhqk,bhkd->bhqd", p, v)
        return torch.einsum("bhqd,hdm->bqm", ctx, w_o)

    a = _A_ref(A_x, A_k_cache, A_v_cache, A_wq, A_wo)
    b = _B_ref(B_x, B_c_kv, B_w_q, B_w_uk, B_w_uv, B_w_o)
    return torch.concatenate([a, b], axis=-1)
```

```python
from gen import *

RS = 1040
BUF = 64 * RS
SC = 0x3e0293ee
import struct, math
def f32bits(x):
    return struct.unpack("<I", struct.pack("<f", x))[0]
SCBITS = f32bits(128 ** -0.5 * math.log2(math.e))

def xreduce(a, op, x, tmp):
    a(f"""    v_mov_b32 v{tmp}, v{x}
    s_nop 1
    v_permlane16_swap_b32 v{x}, v{tmp}
    s_nop 1
    {op} v{x}, v{x}, v{tmp}
    v_mov_b32 v{tmp}, v{x}
    s_nop 1
    v_permlane32_swap_b32 v{x}, v{tmp}
    s_nop 1
    {op} v{x}, v{x}, v{tmp}""")

def k2(a):
    a("""
.p2align 8
.type k2_kernel,@function
k2_kernel:
    s_cmp_ge_u32 s2, 256
    s_cbranch_scc1 Lk2_end
    s_lshr_b32 s3, s2, 4
    s_lshl_b32 s3, s3, 3
    s_and_b32 s28, s2, 7
    s_or_b32 s3, s3, s28
    s_bfe_u32 s28, s2, 0x10003
    s_load_dwordx2 s[10:11], s[0:1], 104
    v_and_b32 v1, 63, v0
    v_lshrrev_b32 v2, 4, v1
    v_and_b32 v3, 15, v1
    v_lshrrev_b32 v4, 6, v0
    s_nop 0
    v_readfirstlane_b32 s29, v4
    s_mov_b32 s30, 0x05040100
    s_mov_b32 s31, 0x07060302""")
    a(f"    s_mov_b32 s33, {SCBITS:#x}")
    a("""
    s_cmp_eq_u32 s28, 1
    s_cbranch_scc1 Lk2_b""")
    k2a(a)
    a("Lk2_b:")
    k2b(a)
    a("""
Lk2_end:
    s_endpgm""")

def k2a(a):
    a("""
    s_load_dwordx2 s[4:5], s[0:1], 8
    s_load_dwordx2 s[6:7], s[0:1], 16
    s_waitcnt lgkmcnt(0)""")
    srd(a, 12, 4, 5, 0x4000000)
    srd(a, 16, 6, 7, 0x4000000)
    srd(a, 24, 10, 11, WS_SIZE)
    a("""
    s_lshr_b32 s34, s3, 2
    s_and_b32 s35, s3, 3
    ; Q frags (masked j<4)""")
    for r in range(16):
        a(f"    v_mov_b32 v{16+r}, 0")
    a("""
    v_lshlrev_b32 v5, 8, v3
    v_lshl_add_u32 v5, v2, 4, v5
    s_lshl_b32 s36, s34, 10
    v_cmp_gt_u32 vcc, 4, v3
    s_and_saveexec_b64 s[40:41], vcc""")
    for kk in range(4):
        a(f"    buffer_load_dwordx4 {vr(16+4*kk)}, v5, s[24:27], s36 offen offset:{kk*64}")
    a("""
    s_mov_b64 exec, s[40:41]
    s_lshl_b32 s37, s34, 21
    s_lshl_b32 s38, s35, 17
    s_add_u32 s37, s37, s38
    s_lshl_b32 s38, s29, 15
    s_add_u32 s37, s37, s38
    s_add_u32 s37, s37, 1572864""")
    for t in range(8):
        a(f"    s_add_u32 s38, s37, {t*4096}")
        for kk in range(4):
            a(f"    buffer_load_dwordx4 {ar(16*t+4*kk)}, v5, s[12:15], s38 offen offset:{kk*64} nt")
    a("""
    v_lshlrev_b32 v6, 10, v2
    v_lshl_add_u32 v6, v3, 4, v6""")
    for u in range(4):
        for eh in range(2):
            a(f"    s_add_u32 s38, s37, {u*8192+eh*4096}")
            for e4 in range(4):
                a(f"    buffer_load_dwordx4 {vr(128+32*u+4*(eh*4+e4))}, v6, s[16:19], s38 offen offset:{e4*256} nt")
    a("    s_waitcnt vmcnt(32)")
    for t in range(8):
        for kk in range(4):
            cc = "0" if kk == 0 else vr(32+4*t)
            a(f"    v_mfma_f32_16x16x32_bf16 {vr(32+4*t)}, {ar(16*t+4*kk)}, {vr(16+4*kk)}, {cc}")
    a("    s_nop 7\n    s_nop 3")
    a("    v_max3_f32 v7, v32, v33, v34")
    for r in range(35, 63, 2):
        a(f"    v_max3_f32 v7, v7, v{r}, v{r+1}")
    a("    v_max_f32 v7, v7, v63")
    xreduce(a, "v_max_f32", 7, 8)
    a("    v_mul_f32 v7, s33, v7")
    for r in range(32, 64):
        a(f"    v_fma_f32 v{r}, v{r}, s33, -v7")
    for r in range(32, 64):
        a(f"    v_exp_f32 v{r}, v{r}")
    a("    s_nop 0")
    a("    v_add_f32 v9, v32, v33")
    for r in range(34, 64):
        a(f"    v_add_f32 v9, v9, v{r}")
    xreduce(a, "v_add_f32", 9, 8)
    for u in range(4):
        for q in range(4):
            s = 32 + 8*u + 2*q
            a(f"    v_cvt_pk_bf16_f32 v{96+4*u+q}, v{s}, v{s+1}")
    for u in range(4):
        a(f"    s_waitcnt vmcnt({(3-u)*8})")
        pv_block(a, 128+32*u, 112, 96+4*u, 64, 30, 31, u == 0)
    a("    s_nop 7\n    s_nop 3")
    a("""
    v_and_b32 v10, 3, v3
    s_lshl_b32 s38, s29, 4
    v_lshlrev_b32 v11, 2, v10
    v_add_u32 v12, s38, v11
    v_cmp_gt_u32 vcc, 4, v1
    s_and_saveexec_b64 s[40:41], vcc
    ds_write_b32 v12, v7 offset:8192
    s_mov_b64 exec, s[40:41]
    s_waitcnt lgkmcnt(0)
    s_barrier
    ds_read_b32 v13, v11 offset:8192
    ds_read_b32 v14, v11 offset:8208
    ds_read_b32 v15, v11 offset:8224
    ds_read_b32 v8, v11 offset:8240
    s_waitcnt lgkmcnt(0)
    v_max3_f32 v13, v13, v14, v15
    v_max_f32 v13, v13, v8
    v_sub_f32 v14, v7, v13
    v_exp_f32 v14, v14
    s_nop 0
    v_mul_f32 v9, v9, v14""")
    for r in range(64, 96):
        a(f"    v_mul_f32 v{r}, v{r}, v14")
    a("""
    v_lshlrev_b32 v15, 9, v3
    v_lshl_add_u32 v15, v2, 7, v15
    s_lshl_b32 s38, s29, 11
    v_add_u32 v15, s38, v15
    v_cmp_gt_u32 vcc, 4, v3
    s_and_saveexec_b64 s[40:41], vcc""")
    for c in range(8):
        a(f"    ds_write_b128 v15, {vr(64+4*c)} offset:{c*16}")
    a("""
    s_mov_b64 exec, s[40:41]
    v_cmp_gt_u32 vcc, 4, v1
    s_and_saveexec_b64 s[40:41], vcc
    ds_write_b32 v12, v9 offset:8256
    s_mov_b64 exec, s[40:41]
    s_waitcnt lgkmcnt(0)
    s_barrier""")
    a(f"""
    v_lshlrev_b32 v16, 2, v0
    ds_read_b32 v20, v16
    ds_read_b32 v21, v16 offset:2048
    ds_read_b32 v22, v16 offset:4096
    ds_read_b32 v23, v16 offset:6144
    ds_read_b32 v24, v16 offset:1024
    ds_read_b32 v25, v16 offset:3072
    ds_read_b32 v26, v16 offset:5120
    ds_read_b32 v27, v16 offset:7168
    s_waitcnt lgkmcnt(0)
    v_add_f32 v20, v20, v21
    v_add_f32 v22, v22, v23
    v_add_f32 v20, v20, v22
    v_add_f32 v24, v24, v25
    v_add_f32 v26, v26, v27
    v_add_f32 v24, v24, v26
    v_lshrrev_b32 v17, 7, v0
    v_bfe_u32 v18, v0, 5, 2
    v_bfe_u32 v19, v0, 2, 3
    v_and_b32 v21, 3, v0
    v_lshlrev_b32 v18, 5, v18
    v_lshl_add_u32 v18, v21, 3, v18
    v_add_u32 v18, v18, v19
    v_lshlrev_b32 v17, 11, v17
    v_lshl_add_u32 v18, v18, 2, v17
    s_lshl_b32 s38, s34, 13
    s_lshl_b32 s39, s35, 9
    s_add_u32 s38, s38, s39
    s_add_u32 s38, s38, {WS_PAO:#x}
    buffer_store_dword v20, v18, s[24:27], s38 offen
    s_add_u32 s38, s38, 4096
    buffer_store_dword v24, v18, s[24:27], s38 offen
    v_cmp_gt_u32 vcc, 4, v0
    s_and_saveexec_b64 s[40:41], vcc
    ds_read_b32 v20, v16 offset:8256
    ds_read_b32 v21, v16 offset:8272
    ds_read_b32 v22, v16 offset:8288
    ds_read_b32 v23, v16 offset:8304
    s_waitcnt lgkmcnt(0)
    v_add_f32 v20, v20, v21
    v_add_f32 v22, v22, v23
    v_add_f32 v29, v20, v22
    v_mov_b32 v28, v13
    v_lshlrev_b32 v17, 5, v0
    s_lshl_b32 s38, s34, 7
    s_lshl_b32 s39, s35, 3
    s_add_u32 s38, s38, s39
    s_add_u32 s38, s38, {WS_PAML:#x}
    buffer_store_dwordx2 v[28:29], v17, s[24:27], s38 offen
    s_endpgm""")

def k2b(a):
    a("""
    s_load_dwordx2 s[4:5], s[0:1], 48
    s_waitcnt lgkmcnt(0)""")
    srd(a, 12, 4, 5, 0x2000000)
    srd(a, 24, 10, 11, WS_SIZE)
    a(f"""
    s_lshr_b32 s34, s3, 5
    s_and_b32 s35, s3, 31
    s_and_b32 s42, s29, 1
    s_lshr_b32 s43, s29, 1
    ; Q' frags -> a[0:63]
    v_lshlrev_b32 v5, 10, v3
    v_lshl_add_u32 v5, v2, 4, v5
    s_lshl_b32 s36, s34, 15
    s_lshl_b32 s37, s42, 14
    s_add_u32 s36, s36, s37
    s_add_u32 s36, s36, {WS_QB:#x}""")
    for kk in range(16):
        a(f"    buffer_load_dwordx4 {ar(4*kk)}, v5, s[24:27], s36 offen offset:{kk*64}")
    a(f"""
    v_lshlrev_b32 v6, 4, v1
    s_lshl_b32 s44, s3, 18
    s_lshl_b32 s37, s29, 14
    s_add_u32 s44, s44, s37
    s_mul_i32 s45, s29, {16*RS}""")
    def dma(t):
        a(f"    s_add_u32 m0, s45, {(t%2)*BUF}")
        a(f"    s_add_u32 s46, s44, {t*65536}")
        for q in range(16):
            a(f"    buffer_load_dwordx4 v6, s[12:15], s46 offen nt lds")
            if q < 15:
                a(f"    s_add_u32 s46, s46, 1024")
                a(f"    s_add_u32 m0, m0, {RS}")
                a(f"    s_nop 0")
    dma(0)
    dma(1)
    a("    v_mov_b32 v10, 0xf149f2ca\n    v_mov_b32 v11, 0")
    for r in range(128, 256):
        a(f"    v_mov_b32 v{r}, 0")
    a(f"""
    s_mul_i32 s47, s43, {32*RS}
    v_mul_u32_u24 v12, {RS}, v3
    v_lshl_add_u32 v12, v2, 4, v12
    v_add_u32 v12, s47, v12
    v_add_u32 v13, {BUF}, v12
    v_lshrrev_b32 v14, 2, v3
    v_lshl_add_u32 v14, v2, 2, v14
    v_mul_u32_u24 v14, {RS}, v14
    v_and_b32 v15, 3, v3
    v_lshl_add_u32 v14, v15, 3, v14
    v_add_u32 v14, s47, v14
    v_add_u32 v15, {BUF}, v14""")
    for t in range(4):
        vA = 12 + (t % 2)
        vT = 14 + (t % 2)
        a(f"    s_waitcnt vmcnt({16 if t < 3 else 0})")
        a("    s_barrier")
        def rd(n):
            kk, sub = n // 2, n % 2
            a(f"    ds_read_b128 {vr(40+4*(n%8))}, v{vA} offset:{sub*16*RS+kk*64}")
        for n in range(8):
            rd(n)
        for n in range(32):
            kk, sub = n // 2, n % 2
            a(f"    s_waitcnt lgkmcnt({min(7, 31-n)})")
            cc = "0" if kk == 0 else vr(32+4*sub)
            a(f"    v_mfma_f32_16x16x32_bf16 {vr(32+4*sub)}, {vr(40+4*(n%8))}, {ar(4*kk)}, {cc}")
            if n + 8 < 32:
                rd(n + 8)
        def trd(ct):
            a(f"    ds_read_b64_tr_b16 {vr(72+4*(ct%8),2)}, v{vT} offset:{ct*32}")
            a(f"    ds_read_b64_tr_b16 {vr(74+4*(ct%8),2)}, v{vT} offset:{16*RS+ct*32}")
        for ct in range(6):
            trd(ct)
        a("    s_nop 3")
        a("""    v_max3_f32 v16, v32, v33, v34
    v_max3_f32 v16, v16, v35, v36
    v_max3_f32 v16, v16, v37, v38
    v_max_f32 v16, v16, v39""")
        xreduce(a, "v_max_f32", 16, 17)
        a("""    v_max_f32 v16, v16, v10
    v_sub_f32 v17, v10, v16
    v_mul_f32 v17, s33, v17
    v_exp_f32 v17, v17
    v_mov_b32 v10, v16
    v_mul_f32 v16, s33, v16""")
        for r in range(32, 40):
            a(f"    v_fma_f32 v{r}, v{r}, s33, -v16")
        for r in range(32, 40):
            a(f"    v_exp_f32 v{r}, v{r}")
        a("    v_mul_f32 v11, v11, v17")
        for r in range(32, 40):
            a(f"    v_add_f32 v11, v11, v{r}")
        for q in range(4):
            a(f"    v_cvt_pk_bf16_f32 v{104+q}, v{32+2*q}, v{33+2*q}")
        for r in range(128, 256):
            a(f"    v_mul_f32 v{r}, v{r}, v17")
        a("    s_nop 1")
        for ct in range(32):
            rem = min(5, 31 - ct)
            a(f"    s_waitcnt lgkmcnt({2*rem})")
            a(f"    v_mfma_f32_16x16x32_bf16 {vr(128+4*ct)}, {vr(72+4*(ct%8))}, v[104:107], {vr(128+4*ct)}")
            if ct + 6 < 32:
                trd(ct + 6)
        if t < 3:
            a("    s_barrier")
        if t < 2:
            dma(t + 2)
    a("    s_nop 7\n    s_nop 3")
    xreduce(a, "v_add_f32", 11, 17)
    a(f"""
    s_barrier
    v_lshlrev_b32 v16, 4, v1
    s_lshl_b32 s47, s42, 15
    v_add_u32 v16, s47, v16
    s_lshl_b32 s46, s42, 9
    v_lshlrev_b32 v18, 3, v1
    v_add_u32 v18, s46, v18
    s_cmp_eq_u32 s43, 0
    s_cbranch_scc1 Lk2b_recv""")
    for ct in range(32):
        a(f"    ds_write_b128 v16, {vr(128+4*ct)} offset:{ct*1024}")
    a(f"""
    v_add_u32 v18, 65536, v18
    ds_write_b64 v18, v[10:11]
    s_waitcnt lgkmcnt(0)
    s_barrier
    s_endpgm
Lk2b_recv:
    s_barrier
    v_add_u32 v18, 65536, v18
    ds_read_b64 v[20:21], v18
    s_waitcnt lgkmcnt(0)
    v_max_f32 v22, v10, v20
    v_sub_f32 v23, v10, v22
    v_sub_f32 v24, v20, v22
    v_mul_f32 v23, s33, v23
    v_mul_f32 v24, s33, v24
    v_exp_f32 v23, v23
    v_exp_f32 v24, v24
    s_nop 0
    v_mul_f32 v11, v11, v23
    v_fma_f32 v11, v21, v24, v11
    v_mul_f32 v10, s33, v22
    v_lshlrev_b32 v19, 11, v3
    v_lshl_add_u32 v19, v2, 4, v19
    s_lshl_b32 s46, s3, 16
    s_lshl_b32 s47, s42, 15
    s_add_u32 s46, s46, s47
    s_add_u32 s46, s46, {WS_PBO:#x}""")
    for g in range(4):
        for q in range(8):
            a(f"    ds_read_b128 {vr(40+4*q)}, v16 offset:{(g*8+q)*1024}")
        a("    s_waitcnt lgkmcnt(0)")
        for q in range(8):
            ct = g*8+q
            for i in range(4):
                a(f"    v_mul_f32 v{40+4*q+i}, v{40+4*q+i}, v24")
                a(f"    v_fma_f32 v{128+4*ct+i}, v{128+4*ct+i}, v23, v{40+4*q+i}")
            a(f"    buffer_store_dwordx4 {vr(128+4*ct)}, v19, s[24:27], s46 offen offset:{ct*64}")
    a(f"""
    v_lshlrev_b32 v19, 8, v3
    s_lshl_b32 s46, s34, 13
    s_lshl_b32 s47, s42, 12
    s_add_u32 s46, s46, s47
    s_lshl_b32 s47, s35, 3
    s_add_u32 s46, s46, s47
    s_add_u32 s46, s46, {WS_PBML:#x}
    v_cmp_gt_u32 vcc, 16, v1
    s_and_saveexec_b64 s[40:41], vcc
    buffer_store_dwordx2 v[10:11], v19, s[24:27], s46 offen
    s_endpgm""")
```

```python
from gen import *

def allreduce16(a, op, x, tmp):
    for r in (1, 2, 4, 8):
        a(f"    s_nop 1")
        a(f"    v_mov_b32_dpp v{tmp}, v{x} row_ror:{r} row_mask:0xf bank_mask:0xf")
        a(f"    {op} v{x}, v{x}, v{tmp}")

def swap16(a, op, x, tmp):
    a(f"""    v_mov_b32 v{tmp}, v{x}
    s_nop 1
    v_permlane16_swap_b32 v{x}, v{tmp}
    s_nop 1
    {op} v{x}, v{x}, v{tmp}""")

def k3(a):
    a("""
.p2align 8
.type k3_kernel,@function
k3_kernel:
    s_cmp_ge_u32 s2, 256
    s_cbranch_scc1 Lk3_end
    s_lshr_b32 s28, s2, 7
    s_bfe_u32 s3, s2, 0x50002
    s_and_b32 s34, s2, 3
    s_and_b32 s35, s2, 127
    s_load_dwordx2 s[10:11], s[0:1], 104
    v_and_b32 v1, 63, v0
    v_lshrrev_b32 v2, 4, v1
    v_and_b32 v3, 15, v1
    v_lshrrev_b32 v4, 6, v0
    s_nop 0
    v_readfirstlane_b32 s29, v4
    s_mov_b32 s30, 0x05040100
    s_mov_b32 s31, 0x07060302
    s_cmp_eq_u32 s28, 1
    s_cbranch_scc1 Lk3_b""")
    k3a(a)
    a("Lk3_b:")
    k3b(a)
    a("""
Lk3_end:
    s_endpgm""")

def lds_reduce4_and(a, accbase, ldsbase):
    a(f"""
    s_nop 7
    s_nop 3
    v_lshlrev_b32 v15, 9, v3
    v_lshl_add_u32 v15, v2, 7, v15
    s_lshl_b32 s38, s29, 11
    v_add_u32 v15, s38, v15
    v_cmp_gt_u32 vcc, 4, v3
    s_and_saveexec_b64 s[40:41], vcc""")
    for c in range(8):
        a(f"    ds_write_b128 v15, {vr(accbase+4*c)} offset:{ldsbase+c*16}")
    a(f"""
    s_mov_b64 exec, s[40:41]
    s_waitcnt lgkmcnt(0)
    s_barrier
    v_lshlrev_b32 v16, 2, v0
    ds_read_b32 v20, v16 offset:{ldsbase}
    ds_read_b32 v21, v16 offset:{ldsbase+2048}
    ds_read_b32 v22, v16 offset:{ldsbase+4096}
    ds_read_b32 v23, v16 offset:{ldsbase+6144}
    ds_read_b32 v24, v16 offset:{ldsbase+1024}
    ds_read_b32 v25, v16 offset:{ldsbase+3072}
    ds_read_b32 v26, v16 offset:{ldsbase+5120}
    ds_read_b32 v27, v16 offset:{ldsbase+7168}
    s_waitcnt lgkmcnt(0)
    v_add_f32 v20, v20, v21
    v_add_f32 v22, v22, v23
    v_add_f32 v20, v20, v22
    v_add_f32 v24, v24, v25
    v_add_f32 v26, v26, v27
    v_add_f32 v24, v24, v26""")

def k3a(a):
    a("""
    s_load_dwordx2 s[4:5], s[0:1], 32
    s_waitcnt lgkmcnt(0)""")
    srd(a, 12, 4, 5, 0x400000)
    srd(a, 24, 10, 11, WS_SIZE)
    a("""
    v_lshlrev_b32 v5, 13, v2
    v_lshl_add_u32 v5, v3, 4, v5
    s_lshl_b32 s36, s3, 17
    s_lshl_b32 s37, s29, 15
    s_add_u32 s36, s36, s37
    s_lshl_b32 s37, s34, 8
    s_add_u32 s36, s36, s37""")
    for i in range(8):
        if i == 4:
            a("    s_add_u32 s36, s36, 4096")
        a(f"    buffer_load_dwordx4 {vr(32+4*i)}, v5, s[12:15], s36 offen offset:{(i%4)*1024} nt")
    a(f"""
    v_mov_b32 v8, 0
    v_mov_b32 v9, 0
    v_mov_b32 v10, 0
    v_mov_b32 v11, 0
    v_lshlrev_b32 v6, 16, v3
    v_lshl_add_u32 v6, v2, 5, v6
    s_lshl_b32 s36, s3, 11
    s_lshl_b32 s37, s29, 7
    s_add_u32 s36, s36, s37
    s_add_u32 s36, s36, {WS_PAO:#x}
    v_lshlrev_b32 v7, 10, v3
    s_lshl_b32 s37, s3, 5
    s_add_u32 s37, s37, {WS_PAML:#x}
    v_cmp_gt_u32 vcc, 4, v3
    s_and_saveexec_b64 s[40:41], vcc
    s_cbranch_execz Lk3a_skip""")
    for s in range(4):
        a(f"    buffer_load_dwordx4 {vr(64+8*s)}, v6, s[24:27], s36 offen offset:{s*512}")
        a(f"    buffer_load_dwordx4 {vr(68+8*s)}, v6, s[24:27], s36 offen offset:{s*512+16}")
    a(f"""
    buffer_load_dwordx4 v[96:99], v7, s[24:27], s37 offen
    buffer_load_dwordx4 v[100:103], v7, s[24:27], s37 offen offset:16
    s_waitcnt vmcnt(0)
    v_max3_f32 v104, v96, v98, v100
    v_max_f32 v104, v104, v102
    v_sub_f32 v96, v96, v104
    v_sub_f32 v98, v98, v104
    v_sub_f32 v100, v100, v104
    v_sub_f32 v102, v102, v104
    v_exp_f32 v96, v96
    v_exp_f32 v98, v98
    v_exp_f32 v100, v100
    v_exp_f32 v102, v102
    s_nop 0
    v_mul_f32 v105, v96, v97
    v_fma_f32 v105, v98, v99, v105
    v_fma_f32 v105, v100, v101, v105
    v_fma_f32 v105, v102, v103, v105
    v_rcp_f32 v105, v105
    s_nop 0
    v_mul_f32 v96, v96, v105
    v_mul_f32 v98, v98, v105
    v_mul_f32 v100, v100, v105
    v_mul_f32 v102, v102, v105""")
    for e in range(8):
        a(f"    v_mul_f32 v{64+e}, v{64+e}, v96")
        a(f"    v_fma_f32 v{64+e}, v{72+e}, v98, v{64+e}")
        a(f"    v_fma_f32 v{64+e}, v{80+e}, v100, v{64+e}")
        a(f"    v_fma_f32 v{64+e}, v{88+e}, v102, v{64+e}")
    for q in range(4):
        a(f"    v_cvt_pk_bf16_f32 v{8+q}, v{64+2*q}, v{65+2*q}")
    a("""
Lk3a_skip:
    s_mov_b64 exec, s[40:41]
    s_waitcnt vmcnt(0)""")
    pv_block(a, 32, 112, 8, 64, 30, 31, True)
    lds_reduce4_and(a, 64, 0)
    a(f"""
    s_lshl_b32 s38, s35, 11
    s_add_u32 s38, s38, {WS_OPA:#x}
    buffer_store_dword v20, v16, s[24:27], s38 offen
    buffer_store_dword v24, v16, s[24:27], s38 offen offset:1024
    s_endpgm""")

def k3b(a):
    a("""
    s_load_dwordx2 s[4:5], s[0:1], 72
    s_load_dwordx2 s[6:7], s[0:1], 80
    s_waitcnt lgkmcnt(0)""")
    srd(a, 12, 4, 5, 0x400000)
    srd(a, 16, 6, 7, 0x400000)
    srd(a, 24, 10, 11, WS_SIZE)
    a(f"""
    v_and_b32 v5, 31, v1
    v_lshlrev_b32 v5, 3, v5
    s_lshl_b32 s36, s29, 13
    s_lshl_b32 s37, s3, 8
    s_add_u32 s36, s36, s37
    s_add_u32 s36, s36, {WS_PBML:#x}
    buffer_load_dwordx2 v[8:9], v5, s[24:27], s36 offen
    v_lshlrev_b32 v6, 3, v1
    s_lshl_b32 s36, s29, 21
    s_lshl_b32 s37, s3, 11
    s_add_u32 s36, s36, s37
    s_lshl_b32 s37, s34, 9
    s_add_u32 s36, s36, s37
    s_add_u32 s36, s36, {WS_PBO:#x}""")
    for s in range(32):
        a(f"    buffer_load_dwordx2 {vr(32+2*s,2)}, v6, s[24:27], s36 offen")
        if s < 31:
            a(f"    s_add_u32 s36, s36, 65536")
    a("""
    v_lshlrev_b32 v5, 16, v2
    v_lshl_add_u32 v5, v3, 4, v5
    s_lshl_b32 s36, s34, 20
    s_lshl_b32 s37, s29, 18
    s_add_u32 s36, s36, s37
    s_lshl_b32 s37, s3, 8
    s_add_u32 s36, s36, s37""")
    for i in range(8):
        a(f"    buffer_load_dwordx4 {vr(96+4*i)}, v5, s[12:15], s36 offen nt")
        if i < 7:
            a("    s_add_u32 s36, s36, 8192")
    a("""
    v_lshlrev_b32 v5, 13, v2
    v_lshl_add_u32 v5, v3, 4, v5
    s_lshl_b32 s36, s3, 17
    s_lshl_b32 s37, s29, 8
    s_add_u32 s36, s36, s37""")
    for kb in range(4):
        for i in range(8):
            a(f"    buffer_load_dwordx4 {vr(128+32*kb+4*i)}, v5, s[16:19], s36 offen offset:{(i%4)*1024}")
            if i == 3:
                a("    s_add_u32 s36, s36, 4096")
            if i == 7 and kb < 3:
                a("    s_add_u32 s36, s36, 28672")
    a("    s_waitcnt vmcnt(63)")
    return_point = None
    a("    v_mov_b32 v10, v8")
    allreduce16(a, "v_max_f32", 10, 11)
    swap16(a, "v_max_f32", 10, 11)
    a("""    v_sub_f32 v10, v8, v10
    v_exp_f32 v10, v10
    s_nop 0
    v_mul_f32 v12, v10, v9""")
    allreduce16(a, "v_add_f32", 12, 11)
    swap16(a, "v_add_f32", 12, 11)
    a("""    v_rcp_f32 v12, v12
    s_nop 0
    v_mul_f32 v10, v10, v12
    s_nop 1""")
    for s in range(32):
        a(f"    v_readlane_b32 s{64+s}, v10, {s}")
    a("    s_nop 1\n    s_waitcnt vmcnt(40)")
    a("    v_mul_f32 v13, s64, v32\n    v_mul_f32 v14, s64, v33")
    for s in range(1, 32):
        a(f"    v_fma_f32 v13, v{32+2*s}, s{64+s}, v13")
        a(f"    v_fma_f32 v14, v{33+2*s}, s{64+s}, v14")
    a("""
    v_cvt_pk_bf16_f32 v13, v13, v14
    s_lshl_b32 s38, s29, 8
    v_lshlrev_b32 v15, 2, v1
    v_add_u32 v15, s38, v15
    ds_write_b32 v15, v13
    s_waitcnt lgkmcnt(0)
    s_barrier
    v_mov_b32 v8, 0
    v_mov_b32 v9, 0
    v_mov_b32 v10, 0
    v_mov_b32 v11, 0
    v_lshlrev_b32 v15, 8, v3
    v_lshl_add_u32 v15, v2, 4, v15
    s_lshl_b32 s38, s29, 6
    v_add_u32 v17, s38, v15
    v_cmp_gt_u32 vcc, 4, v3
    s_and_saveexec_b64 s[40:41], vcc
    ds_read_b128 v[8:11], v17
    s_mov_b64 exec, s[40:41]
    s_waitcnt lgkmcnt(0) vmcnt(32)""")
    pv_block(a, 96, 24, 8, 32, 30, 31, True)
    lds_reduce4_and(a, 32, 1024)
    a("""
    v_cvt_pk_bf16_f32 v20, v20, v20
    v_cvt_pk_bf16_f32 v24, v24, v24
    v_lshrrev_b32 v17, 7, v0
    v_bfe_u32 v18, v0, 5, 2
    v_bfe_u32 v19, v0, 2, 3
    v_and_b32 v21, 3, v0
    v_lshlrev_b32 v18, 5, v18
    v_lshl_add_u32 v18, v21, 3, v18
    v_add_u32 v18, v18, v19
    v_lshl_add_u32 v18, v17, 7, v18
    v_lshlrev_b32 v18, 1, v18
    ds_write_b16 v18, v20 offset:9216
    ds_write_b16 v18, v24 offset:9728
    s_waitcnt lgkmcnt(0)
    s_barrier""")
    for r in range(16):
        a(f"    v_mov_b32 v{64+r}, 0")
    a("""
    v_lshlrev_b32 v15, 8, v3
    v_lshl_add_u32 v15, v2, 4, v15
    v_cmp_gt_u32 vcc, 4, v3
    s_and_saveexec_b64 s[40:41], vcc""")
    for kb in range(4):
        a(f"    ds_read_b128 {vr(64+4*kb)}, v15 offset:{9216+kb*64}")
    a("""
    s_mov_b64 exec, s[40:41]
    s_waitcnt lgkmcnt(0) vmcnt(0)""")
    for kb in range(4):
        pv_block(a, 128+32*kb, 24, 64+4*kb, 32, 30, 31, kb == 0)
    a(f"""
    s_nop 7
    s_nop 3
    v_lshlrev_b32 v15, 11, v3
    v_lshl_add_u32 v15, v2, 7, v15
    s_lshl_b32 s38, s35, 13
    s_lshl_b32 s39, s29, 9
    s_add_u32 s38, s38, s39
    s_add_u32 s38, s38, {WS_OPB:#x}
    v_cmp_gt_u32 vcc, 4, v3
    s_and_saveexec_b64 s[40:41], vcc""")
    for c in range(8):
        a(f"    buffer_store_dwordx4 {vr(32+4*c)}, v15, s[24:27], s38 offen offset:{c*16}")
    a("    s_endpgm")

def k4(a):
    a(f"""
.p2align 8
.type k4_kernel,@function
k4_kernel:
    s_cmp_ge_u32 s2, 40
    s_cbranch_scc1 Lk4_end
    s_load_dwordx2 s[10:11], s[0:1], 104
    s_load_dwordx2 s[8:9], s[0:1], 88
    s_waitcnt lgkmcnt(0)""")
    srd(a, 24, 10, 11, WS_SIZE)
    srd(a, 20, 8, 9, 8192)
    a(f"""
    s_cmp_ge_u32 s2, 8
    s_cbranch_scc1 Lk4_b
    ; A: o = wg*256 + t ; b = o>>9 ; n = o&511
    s_lshl_b32 s3, s2, 8
    v_add_u32 v1, s3, v0
    v_lshrrev_b32 v2, 9, v1
    v_and_b32 v3, 511, v1
    v_and_b32 v4, 7, v3
    v_bfe_u32 v5, v3, 3, 2
    v_bfe_u32 v6, v3, 5, 2
    v_lshlrev_b32 v6, 5, v6
    v_lshl_add_u32 v6, v4, 2, v6
    v_add_u32 v6, v6, v5
    v_lshrrev_b32 v7, 7, v3
    v_lshlrev_b32 v7, 11, v7
    v_lshl_add_u32 v7, v2, 9, v7
    v_lshl_add_u32 v7, v6, 2, v7
    s_mov_b32 s30, {WS_OPA:#x}""")
    for h in range(32):
        a(f"    buffer_load_dword v{16+h}, v7, s[24:27], s30 offen")
        if h < 31:
            a("    s_add_u32 s30, s30, 8192")
    a("    s_waitcnt vmcnt(0)")
    for h in range(1, 32):
        a(f"    v_add_f32 v16, v16, v{16+h}")
    a(f"""
    v_cvt_pk_bf16_f32 v16, v16, v16
    v_lshlrev_b32 v2, 10, v2
    v_add_u32 v2, v2, v3
    v_lshlrev_b32 v2, 1, v2
    buffer_store_short v16, v2, s[20:23], 0 offen
    s_endpgm
Lk4_b:
    s_sub_u32 s3, s2, 8
    s_lshl_b32 s3, s3, 6
    v_and_b32 v1, 63, v0
    v_add_u32 v1, s3, v1
    v_lshrrev_b32 v8, 6, v0
    v_lshrrev_b32 v2, 9, v1
    v_and_b32 v3, 511, v1
    v_and_b32 v4, 7, v3
    v_bfe_u32 v5, v3, 3, 2
    v_bfe_u32 v6, v3, 5, 2
    v_lshlrev_b32 v6, 5, v6
    v_lshl_add_u32 v6, v4, 2, v6
    v_add_u32 v6, v6, v5
    v_lshrrev_b32 v7, 7, v3
    v_lshl_add_u32 v6, v7, 7, v6
    v_lshlrev_b32 v7, 11, v2
    v_lshl_add_u32 v7, v6, 2, v7
    v_lshl_add_u32 v7, v8, 18, v7
    s_mov_b32 s30, {WS_OPB:#x}""")
    for k in range(32):
        a(f"    buffer_load_dword v{16+k}, v7, s[24:27], s30 offen")
        if k < 31:
            a("    s_add_u32 s30, s30, 8192")
    a("    s_waitcnt vmcnt(0)")
    for k in range(1, 32):
        a(f"    v_add_f32 v16, v16, v{16+k}")
    a(f"""
    v_lshlrev_b32 v9, 2, v0
    ds_write_b32 v9, v16
    s_waitcnt lgkmcnt(0)
    s_barrier
    v_cmp_gt_u32 vcc, 64, v0
    s_and_saveexec_b64 s[40:41], vcc
    ds_read_b32 v17, v9 offset:256
    ds_read_b32 v18, v9 offset:512
    ds_read_b32 v19, v9 offset:768
    s_waitcnt lgkmcnt(0)
    v_add_f32 v16, v16, v17
    v_add_f32 v18, v18, v19
    v_add_f32 v16, v16, v18
    v_cvt_pk_bf16_f32 v16, v16, v16
    v_lshlrev_b32 v2, 10, v2
    v_add_u32 v2, v2, v3
    v_add_u32 v2, 512, v2
    v_lshlrev_b32 v2, 1, v2
    buffer_store_short v16, v2, s[20:23], 0 offen
Lk4_end:
    s_endpgm""")
```

```python
import sys

WS_QA   = 0x0
WS_QB   = 0x10000
WS_PAO  = 0x40000
WS_PAML = 0x80000
WS_PBO  = 0x100000
WS_PBML = 0x900000
WS_OPA  = 0xA00000
WS_OPB  = 0xB00000
WS_SIZE = 0x10000000

class Asm:
    def __init__(self):
        self.lines = []
        self.uid = 0
    def __call__(self, s):
        for l in s.strip("\n").split("\n"):
            self.lines.append(l)
    def label(self, base):
        self.uid += 1
        return f"L{base}_{self.uid}"
    def text(self):
        return "\n".join(self.lines) + "\n"

def srd(a, dst, lo, hi, nbytes):
    a(f"""
    s_mov_b32 s{dst}, s{lo}
    s_mov_b32 s{dst+1}, s{hi}
    s_mov_b32 s{dst+2}, {nbytes:#x}
    s_mov_b32 s{dst+3}, 0x00020000""")

def vr(b, n=4):
    return f"v[{b}:{b+n-1}]"
def ar(b, n=4):
    return f"a[{b}:{b+n-1}]"

def kd(a, name, vgpr, accum, sgpr=102):
    a(f""".amdhsa_kernel {name}
  .amdhsa_next_free_vgpr {vgpr}
  .amdhsa_next_free_sgpr {sgpr}
  .amdhsa_accum_offset {accum}
  .amdhsa_group_segment_fixed_size 0
  .amdhsa_kernarg_size 112
  .amdhsa_user_sgpr_count 2
  .amdhsa_user_sgpr_kernarg_segment_ptr 1
  .amdhsa_system_sgpr_workgroup_id_x 1
.end_amdhsa_kernel""")

def pv_block(a, R, F, X, acc, slo, shi, first):
    for c in range(8):
        f = F + 4 * (c & 1)
        sel = shi if (c & 1) else slo
        for u in range(4):
            a(f"    v_perm_b32 v{f+u}, v{R+4*(2*u+1)+c//2}, v{R+4*(2*u)+c//2}, s{sel}")
        a("    s_nop 1")
        cc = "0" if first else vr(acc + 4 * c)
        a(f"    v_mfma_f32_16x16x32_bf16 {vr(acc+4*c)}, {vr(f)}, {vr(X)}, {cc}")

def k1(a):
    a("""
.p2align 8
.type k1_kernel,@function
k1_kernel:
    s_cmp_ge_u32 s2, 64
    s_cbranch_scc1 Lk1_end
    s_and_b32 s3, s2, 31
    s_lshr_b32 s28, s2, 5
    s_load_dwordx2 s[10:11], s[0:1], 104
    s_load_dwordx2 s[8:9], s[0:1], 64
    s_cmp_eq_u32 s28, 0
    s_cbranch_scc1 Lk1_a
    s_load_dwordx2 s[4:5], s[0:1], 40
    s_load_dwordx2 s[6:7], s[0:1], 56
    s_branch Lk1_go
Lk1_a:
    s_load_dwordx2 s[4:5], s[0:1], 0
    s_load_dwordx2 s[6:7], s[0:1], 24
Lk1_go:
    v_and_b32 v1, 63, v0
    v_lshrrev_b32 v2, 4, v1
    v_and_b32 v3, 15, v1
    v_lshrrev_b32 v4, 6, v0
    s_nop 0
    v_readfirstlane_b32 s29, v4
    s_mov_b32 s30, 0x05040100
    s_mov_b32 s31, 0x07060302
    s_waitcnt lgkmcnt(0)""")
    srd(a, 12, 4, 5, 4096)
    srd(a, 16, 6, 7, 0x400000)
    srd(a, 20, 8, 9, 0x400000)
    srd(a, 24, 10, 11, WS_SIZE)
    a("""
    v_lshlrev_b32 v5, 16, v2
    v_lshl_add_u32 v5, v3, 4, v5
    s_lshl_b32 s32, s29, 18
    s_lshl_b32 s33, s3, 8
    s_add_u32 s32, s32, s33""")
    for i in range(8):
        a(f"    s_add_u32 s34, s32, {i*8192}")
        a(f"    buffer_load_dwordx4 {vr(8+4*i)}, v5, s[16:19], s34 offen")
    a("""
    v_lshlrev_b32 v6, 10, v3
    v_lshl_add_u32 v6, v2, 4, v6
    s_lshl_b32 s34, s29, 6
    buffer_load_dwordx4 v[4:7], v6, s[12:15], s34 offen""")
    a("""
    s_cmp_eq_u32 s28, 0
    s_cbranch_scc1 Lk1_nou""")
    a("""
    v_lshlrev_b32 v112, 13, v3
    v_lshl_add_u32 v112, v2, 4, v112""")
    for rt in range(2):
        a(f"    s_add_u32 s34, s32, {rt*16*8192}")
        for kk in range(4):
            a(f"    buffer_load_dwordx4 {vr(40+4*(rt*4+kk))}, v112, s[20:23], s34 offen offset:{kk*64}")
    a("""
    s_waitcnt vmcnt(8)
    s_branch Lk1_mm
Lk1_nou:
    s_waitcnt vmcnt(0)
Lk1_mm:""")
    pv_block(a, 8, 72, 4, 80, 30, 31, True)
    a("""
    s_nop 7
    s_nop 3
    v_cmp_gt_u32 vcc, 4, v3
    s_lshl_b32 s34, s29, 11
    v_lshlrev_b32 v113, 9, v3
    v_lshl_add_u32 v113, v2, 7, v113
    v_add_u32 v113, s34, v113
    s_and_saveexec_b64 s[36:37], vcc""")
    for c in range(8):
        a(f"    ds_write_b128 v113, {vr(80+4*c)} offset:{c*16}")
    a("""
    s_mov_b64 exec, s[36:37]
    s_waitcnt lgkmcnt(0)
    s_barrier
    v_cmp_gt_u32 vcc, 512, v0
    s_and_saveexec_b64 s[36:37], vcc
    s_cbranch_execz Lk1_red_done
    v_lshlrev_b32 v114, 2, v0""")
    for w in range(16):
        a(f"    ds_read_b32 v{8+w}, v114 offset:{w*2048}")
    a("    s_waitcnt lgkmcnt(0)")
    for w in range(1, 16):
        a(f"    v_add_f32 v8, v8, v{8+w}")
    a("""
    v_cvt_pk_bf16_f32 v8, v8, v8
    v_lshrrev_b32 v9, 7, v0
    v_bfe_u32 v10, v0, 5, 2
    v_bfe_u32 v11, v0, 2, 3
    v_and_b32 v12, 3, v0
    v_lshlrev_b32 v10, 5, v10
    v_lshl_add_u32 v10, v12, 3, v10
    v_add_u32 v10, v10, v11
    s_cmp_eq_u32 s28, 0
    s_cbranch_scc0 Lk1_red_b
    v_lshlrev_b32 v9, 12, v9
    v_add_u32 v10, v10, v9
    v_lshlrev_b32 v10, 1, v10
    s_lshl_b32 s34, s3, 8
    buffer_store_short v8, v10, s[24:27], s34 offen
    s_branch Lk1_red_done
Lk1_red_b:
    v_lshlrev_b32 v9, 7, v9
    v_add_u32 v10, v10, v9
    v_lshlrev_b32 v10, 1, v10
    ds_write_b16 v10, v8 offset:32768
Lk1_red_done:
    s_mov_b64 exec, s[36:37]
    s_cmp_eq_u32 s28, 0
    s_cbranch_scc1 Lk1_end
    s_waitcnt lgkmcnt(0)
    s_barrier""")
    for r in range(16):
        a(f"    v_mov_b32 v{8+r}, 0")
    a("""
    v_cmp_gt_u32 vcc, 4, v3
    v_lshlrev_b32 v113, 8, v3
    v_lshl_add_u32 v113, v2, 4, v113
    s_and_saveexec_b64 s[36:37], vcc""")
    for kk in range(4):
        a(f"    ds_read_b128 {vr(8+4*kk)}, v113 offset:{32768+kk*64}")
    a("""
    s_mov_b64 exec, s[36:37]
    s_waitcnt lgkmcnt(0) vmcnt(0)""")
    for rt in range(2):
        for kk in range(4):
            cc = "0" if kk == 0 else vr(80+4*rt)
            a(f"    v_mfma_f32_16x16x32_bf16 {vr(80+4*rt)}, {vr(40+4*(rt*4+kk))}, {vr(8+4*kk)}, {cc}")
    a(f"""
    s_nop 7
    s_nop 3
    v_cvt_pk_bf16_f32 v88, v80, v81
    v_cvt_pk_bf16_f32 v89, v82, v83
    v_cvt_pk_bf16_f32 v90, v84, v85
    v_cvt_pk_bf16_f32 v91, v86, v87
    v_lshlrev_b32 v113, 15, v3
    v_lshl_add_u32 v113, v2, 3, v113
    s_lshl_b32 s34, s3, 10
    s_lshl_b32 s35, s29, 6
    s_add_u32 s34, s34, s35
    s_add_u32 s34, s34, {WS_QB:#x}
    v_cmp_gt_u32 vcc, 4, v3
    s_and_saveexec_b64 s[36:37], vcc
    buffer_store_dwordx2 v[88:89], v113, s[24:27], s34 offen
    buffer_store_dwordx2 v[90:91], v113, s[24:27], s34 offen offset:32
    s_mov_b64 exec, s[36:37]
Lk1_end:
    s_endpgm""")

def header(a, launches):
    a(open("concat_heads__sliding_block_cached__compressed_kv_cla__decode.s.ref").read().split("; Override launch")[0].rstrip())
    for l in launches:
        a(f"; @launch kernel={l[0]} grid=({l[1]},1,1) block=({l[2]},1,1) lds={l[3]}")
    a('.amdgcn_target "amdgcn-amd-amdhsa--gfx950"')
    a(".text")
    for l in dict.fromkeys(x[0] for x in launches):
        a(f".globl {l}")

def main(which="all"):
    a = Asm()
    import k2 as K2
    import k3 as K3
    launches = [("k1_kernel", 64, 1024, 36864), ("k2_kernel", 256, 256, 2*K2.BUF + 1024), ("k3_kernel", 256, 256, 10240), ("k4_kernel", 40, 256, 1024)]
    header(a, launches)
    k1(a)
    K2.k2(a)
    K3.k3(a)
    K3.k4(a)
    a('.section .rodata,"a"')
    a(".p2align 6")
    kd(a, "k1_kernel", 128, 128)
    kd(a, "k2_kernel", 512, 256)
    kd(a, "k3_kernel", 256, 256)
    kd(a, "k4_kernel", 48, 48)
    return a.text()

if __name__ == "__main__":
    out = sys.argv[1] if len(sys.argv) > 1 else "out.s"
    open(out, "w").write(main())
```

```python
import sys

WS_QA   = 0x0
WS_QB   = 0x10000
WS_PAO  = 0x40000
WS_PAML = 0x80000
WS_PBO  = 0x100000
WS_PBML = 0x900000
WS_OPA  = 0xA00000
WS_OPB  = 0xB00000
WS_SIZE = 0x10000000

class Asm:
    def __init__(self):
        self.lines = []
        self.uid = 0
    def __call__(self, s):
        import re
        for l in s.strip("\n").split("\n"):
            m = re.search(r"offset:(\d+)", l)
            if m:
                lim = 4096 if "buffer_" in l else 65536
                assert int(m.group(1)) < lim, l
            self.lines.append(l)
    def label(self, base):
        self.uid += 1
        return f"L{base}_{self.uid}"
    def text(self):
        return "\n".join(self.lines) + "\n"

def srd(a, dst, lo, hi, nbytes):
    a(f"""
    s_mov_b32 s{dst}, s{lo}
    s_mov_b32 s{dst+1}, s{hi}
    s_mov_b32 s{dst+2}, {nbytes:#x}
    s_mov_b32 s{dst+3}, 0x00020000""")

def vr(b, n=4):
    return f"v[{b}:{b+n-1}]"
def ar(b, n=4):
    return f"a[{b}:{b+n-1}]"

def kd(a, name, vgpr, accum, sgpr=102):
    a(f""".amdhsa_kernel {name}
  .amdhsa_next_free_vgpr {vgpr}
  .amdhsa_next_free_sgpr {sgpr}
  .amdhsa_accum_offset {accum}
  .amdhsa_group_segment_fixed_size 0
  .amdhsa_kernarg_size 112
  .amdhsa_user_sgpr_count 2
  .amdhsa_user_sgpr_kernarg_segment_ptr 1
  .amdhsa_system_sgpr_workgroup_id_x 1
.end_amdhsa_kernel""")

def pv_block(a, R, F, X, acc, slo, shi, first):
    for c in range(8):
        f = F + 4 * (c & 1)
        sel = shi if (c & 1) else slo
        for u in range(4):
            a(f"    v_perm_b32 v{f+u}, v{R+4*(2*u+1)+c//2}, v{R+4*(2*u)+c//2}, s{sel}")
        a("    s_nop 1")
        cc = "0" if first else vr(acc + 4 * c)
        a(f"    v_mfma_f32_16x16x32_bf16 {vr(acc+4*c)}, {vr(f)}, {vr(X)}, {cc}")

def k1(a):
    a("""
.p2align 8
.type k1_kernel,@function
k1_kernel:
    s_cmp_ge_u32 s2, 64
    s_cbranch_scc1 Lk1_end
    s_and_b32 s3, s2, 31
    s_lshr_b32 s28, s2, 5
    s_load_dwordx2 s[10:11], s[0:1], 104
    s_load_dwordx2 s[8:9], s[0:1], 64
    s_cmp_eq_u32 s28, 0
    s_cbranch_scc1 Lk1_a
    s_load_dwordx2 s[4:5], s[0:1], 40
    s_load_dwordx2 s[6:7], s[0:1], 56
    s_branch Lk1_go
Lk1_a:
    s_load_dwordx2 s[4:5], s[0:1], 0
    s_load_dwordx2 s[6:7], s[0:1], 24
Lk1_go:
    v_and_b32 v1, 63, v0
    v_lshrrev_b32 v2, 4, v1
    v_and_b32 v3, 15, v1
    v_lshrrev_b32 v4, 6, v0
    s_nop 0
    v_readfirstlane_b32 s29, v4
    s_mov_b32 s30, 0x05040100
    s_mov_b32 s31, 0x07060302
    s_waitcnt lgkmcnt(0)""")
    srd(a, 12, 4, 5, 4096)
    srd(a, 16, 6, 7, 0x400000)
    srd(a, 20, 8, 9, 0x400000)
    srd(a, 24, 10, 11, WS_SIZE)
    a("""
    v_lshlrev_b32 v5, 16, v2
    v_lshl_add_u32 v5, v3, 4, v5
    s_lshl_b32 s32, s29, 18
    s_lshl_b32 s33, s3, 8
    s_add_u32 s32, s32, s33""")
    for i in range(8):
        a(f"    s_add_u32 s34, s32, {i*8192}")
        a(f"    buffer_load_dwordx4 {vr(8+4*i)}, v5, s[16:19], s34 offen nt")
    a("""
    v_lshlrev_b32 v6, 10, v3
    v_lshl_add_u32 v6, v2, 4, v6
    s_lshl_b32 s34, s29, 6
    buffer_load_dwordx4 v[4:7], v6, s[12:15], s34 offen""")
    a("""
    s_cmp_eq_u32 s28, 0
    s_cbranch_scc1 Lk1_nou""")
    a("""
    v_lshlrev_b32 v112, 13, v3
    v_lshl_add_u32 v112, v2, 4, v112""")
    for rt in range(2):
        a(f"    s_add_u32 s34, s32, {rt*16*8192}")
        for kk in range(4):
            a(f"    buffer_load_dwordx4 {vr(40+4*(rt*4+kk))}, v112, s[20:23], s34 offen offset:{kk*64} nt")
    a("""
    s_waitcnt vmcnt(8)
    s_branch Lk1_mm
Lk1_nou:
    s_waitcnt vmcnt(0)
Lk1_mm:""")
    pv_block(a, 8, 72, 4, 80, 30, 31, True)
    a("""
    s_nop 7
    s_nop 3
    v_cmp_gt_u32 vcc, 4, v3
    s_lshl_b32 s34, s29, 11
    v_lshlrev_b32 v113, 9, v3
    v_lshl_add_u32 v113, v2, 7, v113
    v_add_u32 v113, s34, v113
    s_and_saveexec_b64 s[36:37], vcc""")
    for c in range(8):
        a(f"    ds_write_b128 v113, {vr(80+4*c)} offset:{c*16}")
    a("""
    s_mov_b64 exec, s[36:37]
    s_waitcnt lgkmcnt(0)
    s_barrier
    v_cmp_gt_u32 vcc, 512, v0
    s_and_saveexec_b64 s[36:37], vcc
    s_cbranch_execz Lk1_red_done
    v_lshlrev_b32 v114, 2, v0""")
    for w in range(16):
        a(f"    ds_read_b32 v{8+w}, v114 offset:{w*2048}")
    a("    s_waitcnt lgkmcnt(0)")
    for w in range(1, 16):
        a(f"    v_add_f32 v8, v8, v{8+w}")
    a("""
    v_cvt_pk_bf16_f32 v8, v8, v8
    v_lshrrev_b32 v9, 7, v0
    v_bfe_u32 v10, v0, 5, 2
    v_bfe_u32 v11, v0, 2, 3
    v_and_b32 v12, 3, v0
    v_lshlrev_b32 v10, 5, v10
    v_lshl_add_u32 v10, v12, 3, v10
    v_add_u32 v10, v10, v11
    s_cmp_eq_u32 s28, 0
    s_cbranch_scc0 Lk1_red_b
    v_lshlrev_b32 v9, 12, v9
    v_add_u32 v10, v10, v9
    v_lshlrev_b32 v10, 1, v10
    s_lshl_b32 s34, s3, 8
    buffer_store_short v8, v10, s[24:27], s34 offen
    s_branch Lk1_red_done
Lk1_red_b:
    v_lshlrev_b32 v9, 7, v9
    v_add_u32 v10, v10, v9
    v_lshlrev_b32 v10, 1, v10
    ds_write_b16 v10, v8 offset:32768
Lk1_red_done:
    s_mov_b64 exec, s[36:37]
    s_cmp_eq_u32 s28, 0
    s_cbranch_scc1 Lk1_end
    s_waitcnt lgkmcnt(0)
    s_barrier""")
    for r in range(16):
        a(f"    v_mov_b32 v{8+r}, 0")
    a("""
    v_cmp_gt_u32 vcc, 4, v3
    v_lshlrev_b32 v113, 8, v3
    v_lshl_add_u32 v113, v2, 4, v113
    s_and_saveexec_b64 s[36:37], vcc""")
    for kk in range(4):
        a(f"    ds_read_b128 {vr(8+4*kk)}, v113 offset:{32768+kk*64}")
    a("""
    s_mov_b64 exec, s[36:37]
    s_waitcnt lgkmcnt(0) vmcnt(0)""")
    for rt in range(2):
        for kk in range(4):
            cc = "0" if kk == 0 else vr(80+4*rt)
            a(f"    v_mfma_f32_16x16x32_bf16 {vr(80+4*rt)}, {vr(40+4*(rt*4+kk))}, {vr(8+4*kk)}, {cc}")
    a(f"""
    s_nop 7
    s_nop 3
    v_cvt_pk_bf16_f32 v88, v80, v81
    v_cvt_pk_bf16_f32 v89, v82, v83
    v_cvt_pk_bf16_f32 v90, v84, v85
    v_cvt_pk_bf16_f32 v91, v86, v87
    v_lshlrev_b32 v113, 15, v3
    v_lshl_add_u32 v113, v2, 3, v113
    s_lshl_b32 s34, s3, 10
    s_lshl_b32 s35, s29, 6
    s_add_u32 s34, s34, s35
    s_add_u32 s34, s34, {WS_QB:#x}
    v_cmp_gt_u32 vcc, 4, v3
    s_and_saveexec_b64 s[36:37], vcc
    buffer_store_dwordx2 v[88:89], v113, s[24:27], s34 offen
    buffer_store_dwordx2 v[90:91], v113, s[24:27], s34 offen offset:32
    s_mov_b64 exec, s[36:37]
Lk1_end:
    s_endpgm""")

def header(a, launches):
    a(open("concat_heads__sliding_block_cached__compressed_kv_cla__decode.s.ref").read().split("; Override launch")[0].rstrip())
    for l in launches:
        a(f"; @launch kernel={l[0]} grid=({l[1]},1,1) block=({l[2]},1,1) lds={l[3]}")
    a('.amdgcn_target "amdgcn-amd-amdhsa--gfx950"')
    a(".text")
    for l in dict.fromkeys(x[0] for x in launches):
        a(f".globl {l}")

def main(which="all"):
    a = Asm()
    import k2 as K2
    import k3 as K3
    launches = [("k1_kernel", 64, 1024, 36864), ("k2_kernel", 256, 256, 2*K2.BUF + 1024), ("k3_kernel", 256, 256, 10240), ("k4_kernel", 40, 256, 1024)]
    header(a, launches)
    k1(a)
    K2.k2(a)
    K3.k3(a)
    K3.k4(a)
    a('.section .rodata,"a"')
    a(".p2align 6")
    kd(a, "k1_kernel", 128, 128)
    kd(a, "k2_kernel", 512, 256)
    kd(a, "k3_kernel", 256, 256)
    kd(a, "k4_kernel", 48, 48)
    return a.text()

if __name__ == "__main__":
    out = sys.argv[1] if len(sys.argv) > 1 else "out.s"
    open(out, "w").write(main())
```

```python
import sys, struct, math
from gen import Asm, srd, vr, ar, pv_block, header
from gen import WS_QA, WS_QB, WS_PAO, WS_PAML, WS_PBO, WS_PBML, WS_SIZE

WS_ACC = 0xA00000
RS = 1040
BUF = 64 * RS
LDS_TICKET = 2 * BUF + 512
LDS_BYTES = 2 * BUF + 1024
def f32bits(x): return struct.unpack("<I", struct.pack("<f", x))[0]
SCBITS = f32bits(128 ** -0.5 * math.log2(math.e))

NL1, NL2 = 64, 128
NPROD, NB, NA, NEPI = NL1 + NL2, 128, 128, 256
WS_QP = 0xD00000
J_B = 0
J_A = J_B + NB
J_E = J_A + NA
J_END = J_E + NEPI
C_TICKET, C_PRODA, C_PRODB, C_ATTA, C_ATTB, C_EPI = 0, 1, 2, 3, 4, 5
C_L1B = 8

def xreduce(a, op, x, tmp):
    a(f"""    v_mov_b32 v{tmp}, v{x}
    s_nop 1
    v_permlane16_swap_b32 v{x}, v{tmp}
    s_nop 1
    {op} v{x}, v{x}, v{tmp}
    v_mov_b32 v{tmp}, v{x}
    s_nop 1
    v_permlane32_swap_b32 v{x}, v{tmp}
    s_nop 1
    {op} v{x}, v{x}, v{tmp}""")

def allreduce16(a, op, x, tmp):
    for r in (1, 2, 4, 8):
        a(f"    s_nop 1")
        a(f"    v_mov_b32_dpp v{tmp}, v{x} row_ror:{r} row_mask:0xf bank_mask:0xf")
        a(f"    {op} v{x}, v{x}, v{tmp}")

def swap16(a, op, x, tmp):
    a(f"""    v_mov_b32 v{tmp}, v{x}
    s_nop 1
    v_permlane16_swap_b32 v{x}, v{tmp}
    s_nop 1
    {op} v{x}, v{x}, v{tmp}""")

PROF = False
WS_PROF = 0xC00000
def prof_store(a):
    if not PROF: return
    a(f"""    s_memrealtime s[54:55]
    s_waitcnt lgkmcnt(0)
    v_mov_b32 v240, s50
    v_mov_b32 v241, s52
    v_mov_b32 v242, s54
    v_mov_b32 v243, s60
    v_mov_b32 v244, s62
    v_mov_b32 v245, s64
    v_mov_b32 v246, s66
    v_mov_b32 v247, s68
    s_lshl_b32 s56, s58, 5
    s_add_u32 s56, s56, {WS_PROF:#x}
    v_mov_b32 v248, 0
    buffer_store_dwordx4 v[240:243], v248, s[24:27], s56 offen
    buffer_store_dwordx4 v[244:247], v248, s[24:27], s56 offen offset:16""")

def stamp(a, k):
    if PROF: a(f"    s_memrealtime s[{60+2*k}:{61+2*k}]")

def signal(a, cidx, sreg=None):
    lab = a.label("sig")
    idx = f"    v_mov_b32 v251, {cidx*4}" if sreg is None else f"    v_lshlrev_b32 v251, 2, {sreg}"
    a(f"""    s_waitcnt vmcnt(0)
    s_barrier
    s_cmp_lg_u32 s29, 0
    s_cbranch_scc1 {lab}
    v_mov_b32 v250, 1
{idx}
    s_mov_b64 s[40:41], exec
    s_mov_b64 exec, 1
    buffer_atomic_add v250, v251, s[96:99], 0 offen sc1""")
    prof_store(a)
    a(f"""    s_mov_b64 exec, s[40:41]
{lab}:""")
    return
    a(f"""    s_waitcnt vmcnt(0)
    s_barrier
    s_cmp_lg_u32 s29, 0
    s_cbranch_scc1 {lab}
    v_mov_b32 v250, 1
    v_mov_b32 v251, {cidx*4}
    s_mov_b64 s[40:41], exec
    s_mov_b64 exec, 1
    buffer_atomic_add v250, v251, s[96:99], 0 offen sc1
    s_mov_b64 exec, s[40:41]
{lab}:""")

def wait_counter(a, cidx, target, sreg=None):
    lab = a.label("wt"); done = a.label("wd")
    idx = f"    v_mov_b32 v31, {cidx*4}" if sreg is None else f"    v_lshlrev_b32 v31, 2, {sreg}"
    a(f"""    s_cmp_lg_u32 s29, 0
    s_cbranch_scc1 {done}
{idx}
{lab}:
    buffer_load_dword v30, v31, s[96:99], 0 offen sc1
    s_waitcnt vmcnt(0)
    v_readfirstlane_b32 s40, v30
    s_cmp_ge_u32 s40, {target}
    s_cbranch_scc1 {done}
    s_sleep 4
    s_branch {lab}
{done}:
    s_barrier""")
    if PROF: a("    s_memrealtime s[52:53]")

def mk(a):
    a("""
.p2align 8
.type mk_kernel,@function
mk_kernel:
    s_load_dwordx2 s[10:11], s[0:1], 104
    s_load_dwordx2 s[8:9], s[0:1], 96
    v_and_b32 v1, 63, v0
    v_lshrrev_b32 v2, 4, v1
    v_and_b32 v3, 15, v1
    v_lshrrev_b32 v4, 6, v0
    s_nop 0
    v_readfirstlane_b32 s29, v4
    s_mov_b32 s30, 0x05040100
    s_mov_b32 s31, 0x07060302""")
    a(f"    s_mov_b32 s33, {SCBITS:#x}")
    a("    s_waitcnt lgkmcnt(0)")
    srd(a, 24, 10, 11, WS_SIZE)
    srd(a, 96, 8, 9, 256)
    a(f"""
Lnext:
    s_cmp_lg_u32 s29, 0
    s_cbranch_scc1 Lnext_w
    v_mov_b32 v250, 1
    v_mov_b32 v251, 0
    s_mov_b64 s[40:41], exec
    s_mov_b64 exec, 1
    buffer_atomic_add v250, v251, s[96:99], 0 offen sc0 sc1
    s_waitcnt vmcnt(0)
    v_mov_b32 v251, {LDS_TICKET}
    ds_write_b32 v251, v250
    s_mov_b64 exec, s[40:41]
    s_waitcnt lgkmcnt(0)
Lnext_w:
    s_barrier
    v_mov_b32 v251, {LDS_TICKET}
    ds_read_b32 v250, v251
    s_waitcnt lgkmcnt(0)
    v_readfirstlane_b32 s3, v250
    s_barrier
    s_mov_b32 s58, s3
    s_memrealtime s[50:51]
    s_memrealtime s[52:53]
    s_cmp_lt_u32 s3, {J_A}
    s_cbranch_scc1 Ljob_b
    s_cmp_lt_u32 s3, {J_E}
    s_cbranch_scc1 Ljob_a
    s_cmp_lt_u32 s3, {J_END}
    s_cbranch_scc1 Ljob_e
    s_endpgm""")
    a("Ljob_b:")
    job_b(a)
    a("Ljob_a:")
    job_a(a)
    a("Ljob_e:")
    job_e(a)

def qfrag_from_partials(a, which, hreg_expr_sgpr, dst, nheads_rows):
    for r in range(16):
        a(f"    v_mov_b32 v{dst+r}, 0")
    a("""    v_cmp_gt_u32 vcc, 4, v3
    s_and_saveexec_b64 s[40:41], vcc""")
    for mh in range(2):
        for kk in range(4):
            a(f"    buffer_load_dwordx4 {vr(64+mh*32+8*kk)}, v5, s[24:27], s36 offen offset:{kk*128}")
            a(f"    buffer_load_dwordx4 {vr(68+mh*32+8*kk)}, v5, s[24:27], s36 offen offset:{kk*128+16}")
        if mh == 0:
            a("    s_add_u32 s36, s36, 65536")
    a("    s_waitcnt vmcnt(0)")
    for r in range(32):
        a(f"    v_add_f32 v{64+r}, v{64+r}, v{96+r}")
    for r in range(16):
        a(f"    v_cvt_pk_bf16_f32 v{dst+r}, v{64+2*r}, v{65+2*r}")
    a("    s_mov_b64 exec, s[40:41]")

def job_l1(a):
    a(f"""
    s_mov_b32 s28, 0
    s_sub_u32 s3, s3, {NL2}
    s_lshr_b32 s34, s3, 1
    s_and_b32 s35, s3, 1
    s_load_dwordx2 s[4:5], s[0:1], 0
    s_load_dwordx2 s[6:7], s[0:1], 24
    s_waitcnt lgkmcnt(0)""")
    srd(a, 12, 4, 5, 4096)
    srd(a, 16, 6, 7, 0x400000)
    a(f"""
    s_cmp_lg_u32 s3, 0
    s_cbranch_scc1 Lp_noz
    v_mov_b32 v8, 0
    v_mov_b32 v9, 0
    v_mov_b32 v10, 0
    v_mov_b32 v11, 0
    v_lshlrev_b32 v5, 4, v0
    s_mov_b32 s36, {WS_ACC:#x}
    buffer_store_dwordx4 v[8:11], v5, s[24:27], s36 offen sc1
    s_add_u32 s36, s36, 4096
    buffer_store_dwordx4 v[8:11], v5, s[24:27], s36 offen sc1
    s_add_u32 s36, s36, 4096
    buffer_store_dwordx4 v[8:11], v5, s[24:27], s36 offen sc1
    s_add_u32 s36, s36, 4096
    buffer_store_dwordx4 v[8:11], v5, s[24:27], s36 offen sc1
Lp_noz:""")
    a("""
    v_lshlrev_b32 v5, 16, v2
    v_lshl_add_u32 v5, v3, 4, v5
    s_lshl_b32 s36, s35, 21
    s_lshl_b32 s37, s29, 19
    s_add_u32 s36, s36, s37
    s_lshl_b32 s37, s34, 8
    s_add_u32 s36, s36, s37""")
    for kb in range(2):
        for i in range(8):
            a(f"    s_add_u32 s37, s36, {kb*262144+i*8192}")
            a(f"    buffer_load_dwordx4 {vr(128+32*kb+4*i)}, v5, s[16:19], s37 offen nt")
    a("""
    v_lshlrev_b32 v6, 10, v3
    v_lshl_add_u32 v6, v2, 4, v6
    s_lshl_b32 s37, s35, 9
    s_lshl_b32 s38, s29, 7
    s_add_u32 s37, s37, s38""")
    for kb in range(2):
        a(f"    buffer_load_dwordx4 {vr(16+4*kb)}, v6, s[12:15], s37 offen offset:{kb*64}")
    a("    s_waitcnt vmcnt(0)")
    for kb in range(2):
        pv_block(a, 128+32*kb, 112, 16+4*kb, 64, 30, 31, kb == 0)
    a("""
    s_nop 7
    s_nop 3
    v_lshlrev_b32 v15, 9, v3
    v_lshl_add_u32 v15, v2, 7, v15
    s_lshl_b32 s38, s29, 11
    v_add_u32 v15, s38, v15
    v_cmp_gt_u32 vcc, 4, v3
    s_and_saveexec_b64 s[40:41], vcc""")
    for c in range(8):
        a(f"    ds_write_b128 v15, {vr(64+4*c)} offset:{c*16}")
    a(f"""
    s_mov_b64 exec, s[40:41]
    s_waitcnt lgkmcnt(0)
    s_barrier
    v_lshlrev_b32 v16, 2, v0
    ds_read_b32 v20, v16
    ds_read_b32 v21, v16 offset:2048
    ds_read_b32 v22, v16 offset:4096
    ds_read_b32 v23, v16 offset:6144
    ds_read_b32 v24, v16 offset:1024
    ds_read_b32 v25, v16 offset:3072
    ds_read_b32 v26, v16 offset:5120
    ds_read_b32 v27, v16 offset:7168
    s_waitcnt lgkmcnt(0)
    v_add_f32 v20, v20, v21
    v_add_f32 v22, v22, v23
    v_add_f32 v20, v20, v22
    v_add_f32 v24, v24, v25
    v_add_f32 v26, v26, v27
    v_add_f32 v24, v24, v26
    v_lshrrev_b32 v17, 7, v0
    v_bfe_u32 v18, v0, 5, 2
    v_bfe_u32 v19, v0, 2, 3
    v_and_b32 v21, 3, v0
    v_lshlrev_b32 v18, 5, v18
    v_lshl_add_u32 v18, v21, 3, v18
    v_add_u32 v18, v18, v19
    v_lshl_add_u32 v18, v17, 12, v18
    v_lshlrev_b32 v18, 2, v18
    s_lshl_b32 s38, s28, 17
    s_lshl_b32 s39, s35, 16
    s_add_u32 s38, s38, s39
    s_lshl_b32 s39, s34, 9
    s_add_u32 s38, s38, s39
    s_add_u32 s38, s38, {WS_QP:#x}
    buffer_store_dword v20, v18, s[24:27], s38 offen sc1
    s_add_u32 s38, s38, 32768
    buffer_store_dword v24, v18, s[24:27], s38 offen sc1
""")
    signal(a, C_PRODA)
    a("    s_endpgm")

def job_l2(a):
    a(f"""
    s_lshr_b32 s34, s3, 2
    s_and_b32 s35, s3, 3
    s_load_dwordx2 s[8:9], s[0:1], 64
    s_load_dwordx2 s[4:5], s[0:1], 40
    s_load_dwordx2 s[6:7], s[0:1], 56
    s_waitcnt lgkmcnt(0)""")
    srd(a, 20, 8, 9, 0x400000)
    srd(a, 12, 4, 5, 4096)
    srd(a, 16, 6, 7, 0x400000)
    a("""
    v_lshlrev_b32 v5, 16, v2
    v_lshl_add_u32 v5, v3, 4, v5
    s_lshl_b32 s36, s29, 20
    s_lshl_b32 s37, s34, 8
    s_add_u32 s36, s36, s37""")
    for kb in range(4):
        for i in range(8):
            a(f"    s_add_u32 s37, s36, {kb*262144+i*8192}")
            a(f"    buffer_load_dwordx4 {vr(128+32*kb+4*i)}, v5, s[16:19], s37 offen nt")
    a("""
    v_lshlrev_b32 v6, 10, v3
    v_lshl_add_u32 v6, v2, 4, v6
    s_lshl_b32 s37, s29, 8""")
    for kb in range(4):
        a(f"    buffer_load_dwordx4 {vr(16+4*kb)}, v6, s[12:15], s37 offen offset:{kb*64}")
    a("""
    v_lshlrev_b32 v7, 13, v3
    v_lshl_add_u32 v7, v2, 4, v7
    s_lshl_b32 s36, s35, 20
    s_lshl_b32 s37, s29, 18
    s_add_u32 s36, s36, s37
    s_lshl_b32 s37, s34, 8
    s_add_u32 s36, s36, s37""")
    for rt in range(2):
        a(f"    s_add_u32 s37, s36, {rt*16*8192}")
        for kk in range(4):
            a(f"    buffer_load_dwordx4 {ar(16*rt+4*kk)}, v7, s[20:23], s37 offen offset:{kk*64} nt")
    a("    s_waitcnt vmcnt(8)")
    for kb in range(4):
        pv_block(a, 128+32*kb, 112, 16+4*kb, 64, 30, 31, kb == 0)
    lds_reduce4(a, 64, 0)
    a("""
    v_cvt_pk_bf16_f32 v20, v20, v20
    v_cvt_pk_bf16_f32 v24, v24, v24
    v_lshrrev_b32 v17, 7, v0
    v_bfe_u32 v18, v0, 5, 2
    v_bfe_u32 v19, v0, 2, 3
    v_and_b32 v21, 3, v0
    v_lshlrev_b32 v18, 5, v18
    v_lshl_add_u32 v18, v21, 3, v18
    v_add_u32 v18, v18, v19
    v_lshl_add_u32 v18, v17, 7, v18
    v_lshlrev_b32 v18, 1, v18
    ds_write_b16 v18, v20 offset:9216
    ds_write_b16 v18, v24 offset:9728
    s_waitcnt lgkmcnt(0)
    s_barrier""")
    for r in range(16):
        a(f"    v_mov_b32 v{16+r}, 0")
    a("""
    v_lshlrev_b32 v15, 8, v3
    v_lshl_add_u32 v15, v2, 4, v15
    v_cmp_gt_u32 vcc, 4, v3
    s_and_saveexec_b64 s[40:41], vcc""")
    for kk in range(4):
        a(f"    ds_read_b128 {vr(16+4*kk)}, v15 offset:{9216+kk*64}")
    a("""
    s_mov_b64 exec, s[40:41]
    s_waitcnt lgkmcnt(0) vmcnt(0)""")
    for rt in range(2):
        for kk in range(4):
            cc = "0" if kk == 0 else vr(64+4*rt)
            a(f"    v_mfma_f32_16x16x32_bf16 {vr(64+4*rt)}, {ar(16*rt+4*kk)}, {vr(16+4*kk)}, {cc}")
    a("    s_nop 7\n    s_nop 3")
    for rt in range(2):
        a(f"    v_cvt_pk_bf16_f32 v{96+2*rt}, v{64+4*rt}, v{65+4*rt}")
        a(f"    v_cvt_pk_bf16_f32 v{97+2*rt}, v{66+4*rt}, v{67+4*rt}")
    a(f"""
    v_lshlrev_b32 v15, 15, v3
    v_lshl_add_u32 v15, v2, 3, v15
    s_lshl_b32 s38, s34, 10
    s_lshl_b32 s39, s35, 8
    s_add_u32 s38, s38, s39
    s_lshl_b32 s39, s29, 6
    s_add_u32 s38, s38, s39
    s_add_u32 s38, s38, {WS_QB:#x}
    v_cmp_gt_u32 vcc, 4, v3
    s_and_saveexec_b64 s[40:41], vcc""")
    for rt in range(2):
        a(f"    buffer_store_dwordx2 {vr(96+2*rt,2)}, v15, s[24:27], s38 offen offset:{rt*32} sc1")
    a("    s_mov_b64 exec, s[40:41]")
    signal(a, C_PRODB)
    a("    s_endpgm")

def job_a(a):
    a(f"""
    s_sub_u32 s3, s3, {J_A}
    s_load_dwordx2 s[4:5], s[0:1], 8
    s_load_dwordx2 s[6:7], s[0:1], 16
    s_waitcnt lgkmcnt(0)""")
    srd(a, 12, 4, 5, 0x4000000)
    srd(a, 16, 6, 7, 0x4000000)
    a("""
    s_lshr_b32 s34, s3, 2
    s_and_b32 s35, s3, 3
    v_lshlrev_b32 v5, 8, v3
    v_lshl_add_u32 v5, v2, 4, v5
    s_lshl_b32 s37, s34, 21
    s_lshl_b32 s38, s35, 17
    s_add_u32 s37, s37, s38
    s_lshl_b32 s38, s29, 15
    s_add_u32 s37, s37, s38
    s_add_u32 s37, s37, 1572864""")
    for t in range(8):
        a(f"    s_add_u32 s38, s37, {t*4096}")
        for kk in range(4):
            a(f"    buffer_load_dwordx4 {ar(16*t+4*kk)}, v5, s[12:15], s38 offen offset:{kk*64} nt")
    a("""
    v_lshlrev_b32 v6, 10, v2
    v_lshl_add_u32 v6, v3, 4, v6""")
    for u in range(4):
        for eh in range(2):
            a(f"    s_add_u32 s38, s37, {u*8192+eh*4096}")
            for e4 in range(4):
                a(f"    buffer_load_dwordx4 {vr(128+32*u+4*(eh*4+e4))}, v6, s[16:19], s38 offen offset:{e4*256} nt")
    a(f"""
    v_lshlrev_b32 v5, 9, v3
    v_lshl_add_u32 v5, v2, 5, v5
    s_lshl_b32 s36, s34, 11
    s_add_u32 s36, s36, {WS_QP:#x}""")
    qfrag_from_partials(a, 0, None, 16, None)
    for t in range(8):
        for kk in range(4):
            cc = "0" if kk == 0 else vr(32+4*t)
            a(f"    v_mfma_f32_16x16x32_bf16 {vr(32+4*t)}, {ar(16*t+4*kk)}, {vr(16+4*kk)}, {cc}")
    a("    s_nop 7\n    s_nop 3")
    a("    v_max3_f32 v7, v32, v33, v34")
    for r in range(35, 63, 2):
        a(f"    v_max3_f32 v7, v7, v{r}, v{r+1}")
    a("    v_max_f32 v7, v7, v63")
    xreduce(a, "v_max_f32", 7, 8)
    a("    v_mul_f32 v7, s33, v7")
    for r in range(32, 64):
        a(f"    v_fma_f32 v{r}, v{r}, s33, -v7")
    for r in range(32, 64):
        a(f"    v_exp_f32 v{r}, v{r}")
    a("    s_nop 0\n    v_add_f32 v9, v32, v33")
    for r in range(34, 64):
        a(f"    v_add_f32 v9, v9, v{r}")
    xreduce(a, "v_add_f32", 9, 8)
    for u in range(4):
        for q in range(4):
            s = 32 + 8*u + 2*q
            a(f"    v_cvt_pk_bf16_f32 v{96+4*u+q}, v{s}, v{s+1}")
    for u in range(4):
        pv_block(a, 128+32*u, 112, 96+4*u, 64, 30, 31, u == 0)
    a("    s_nop 7\n    s_nop 3")
    a("""
    v_and_b32 v10, 3, v3
    s_lshl_b32 s38, s29, 4
    v_lshlrev_b32 v11, 2, v10
    v_add_u32 v12, s38, v11
    v_cmp_gt_u32 vcc, 4, v1
    s_and_saveexec_b64 s[40:41], vcc
    ds_write_b32 v12, v7 offset:8192
    s_mov_b64 exec, s[40:41]
    s_waitcnt lgkmcnt(0)
    s_barrier
    ds_read_b32 v13, v11 offset:8192
    ds_read_b32 v14, v11 offset:8208
    ds_read_b32 v15, v11 offset:8224
    ds_read_b32 v8, v11 offset:8240
    s_waitcnt lgkmcnt(0)
    v_max3_f32 v13, v13, v14, v15
    v_max_f32 v13, v13, v8
    v_sub_f32 v14, v7, v13
    v_exp_f32 v14, v14
    s_nop 0
    v_mul_f32 v9, v9, v14""")
    for r in range(64, 96):
        a(f"    v_mul_f32 v{r}, v{r}, v14")
    a("""
    v_lshlrev_b32 v15, 9, v3
    v_lshl_add_u32 v15, v2, 7, v15
    s_lshl_b32 s38, s29, 11
    v_add_u32 v15, s38, v15
    v_cmp_gt_u32 vcc, 4, v3
    s_and_saveexec_b64 s[40:41], vcc""")
    for c in range(8):
        a(f"    ds_write_b128 v15, {vr(64+4*c)} offset:{c*16}")
    a(f"""
    s_mov_b64 exec, s[40:41]
    v_cmp_gt_u32 vcc, 4, v1
    s_and_saveexec_b64 s[40:41], vcc
    ds_write_b32 v12, v9 offset:8256
    s_mov_b64 exec, s[40:41]
    s_waitcnt lgkmcnt(0)
    s_barrier
    v_lshlrev_b32 v16, 2, v0
    ds_read_b32 v20, v16
    ds_read_b32 v21, v16 offset:2048
    ds_read_b32 v22, v16 offset:4096
    ds_read_b32 v23, v16 offset:6144
    ds_read_b32 v24, v16 offset:1024
    ds_read_b32 v25, v16 offset:3072
    ds_read_b32 v26, v16 offset:5120
    ds_read_b32 v27, v16 offset:7168
    s_waitcnt lgkmcnt(0)
    v_add_f32 v20, v20, v21
    v_add_f32 v22, v22, v23
    v_add_f32 v20, v20, v22
    v_add_f32 v24, v24, v25
    v_add_f32 v26, v26, v27
    v_add_f32 v24, v24, v26
    v_lshrrev_b32 v17, 7, v0
    v_bfe_u32 v18, v0, 5, 2
    v_bfe_u32 v19, v0, 2, 3
    v_and_b32 v21, 3, v0
    v_lshlrev_b32 v18, 5, v18
    v_lshl_add_u32 v18, v21, 3, v18
    v_add_u32 v18, v18, v19
    v_lshlrev_b32 v17, 11, v17
    v_lshl_add_u32 v18, v18, 2, v17
    s_lshl_b32 s38, s34, 13
    s_lshl_b32 s39, s35, 9
    s_add_u32 s38, s38, s39
    s_add_u32 s38, s38, {WS_PAO:#x}
    buffer_store_dword v20, v18, s[24:27], s38 offen sc1
    s_add_u32 s38, s38, 4096
    buffer_store_dword v24, v18, s[24:27], s38 offen sc1
    v_cmp_gt_u32 vcc, 4, v0
    s_and_saveexec_b64 s[40:41], vcc
    ds_read_b32 v20, v16 offset:8256
    ds_read_b32 v21, v16 offset:8272
    ds_read_b32 v22, v16 offset:8288
    ds_read_b32 v23, v16 offset:8304
    s_waitcnt lgkmcnt(0)
    v_add_f32 v20, v20, v21
    v_add_f32 v22, v22, v23
    v_add_f32 v29, v20, v22
    v_mov_b32 v28, v13
    v_lshlrev_b32 v17, 5, v0
    s_lshl_b32 s38, s34, 7
    s_lshl_b32 s39, s35, 3
    s_add_u32 s38, s38, s39
    s_add_u32 s38, s38, {WS_PAML:#x}
    buffer_store_dwordx2 v[28:29], v17, s[24:27], s38 offen sc1
    s_mov_b64 exec, s[40:41]""")
    signal(a, C_ATTA)
    a("    s_branch Lnext")

def job_b(a):
    a(f"""
    s_sub_u32 s3, s3, {J_B}
    s_load_dwordx2 s[4:5], s[0:1], 48
    s_waitcnt lgkmcnt(0)""")
    srd(a, 12, 4, 5, 0x2000000)
    a(f"""
    s_lshr_b32 s34, s3, 5
    s_and_b32 s35, s3, 31
    s_and_b32 s42, s29, 1
    s_lshr_b32 s43, s29, 1
    v_lshlrev_b32 v6, 4, v1
    s_lshl_b32 s44, s3, 18
    s_lshl_b32 s37, s29, 14
    s_add_u32 s44, s44, s37
    s_mul_i32 s45, s29, {16*RS}""")
    def dma(t):
        a(f"    s_add_u32 m0, s45, {(t%2)*BUF}")
        a(f"    s_add_u32 s46, s44, {t*65536}")
        for q in range(16):
            a(f"    buffer_load_dwordx4 v6, s[12:15], s46 offen nt lds")
            if q < 15:
                a(f"    s_add_u32 s46, s46, 1024")
                a(f"    s_add_u32 m0, m0, {RS}")
                a(f"    s_nop 0")
    dma(0)
    dma(1)
    a("    v_mov_b32 v10, 0xf149f2ca\n    v_mov_b32 v11, 0")
    for r in range(128, 256):
        a(f"    v_mov_b32 v{r}, 0")
    a(f"""
    s_mul_i32 s47, s43, {32*RS}
    v_mul_u32_u24 v12, {RS}, v3
    v_lshl_add_u32 v12, v2, 4, v12
    v_add_u32 v12, s47, v12
    v_add_u32 v13, {BUF}, v12
    v_lshrrev_b32 v14, 2, v3
    v_lshl_add_u32 v14, v2, 2, v14
    v_mul_u32_u24 v14, {RS}, v14
    v_and_b32 v15, 3, v3
    v_lshl_add_u32 v14, v15, 3, v14
    v_add_u32 v14, s47, v14
    v_add_u32 v15, {BUF}, v14
    v_lshlrev_b32 v5, 10, v3
    v_lshl_add_u32 v5, v2, 4, v5
    s_lshl_b32 s36, s34, 15
    s_lshl_b32 s37, s42, 14
    s_add_u32 s36, s36, s37
    s_add_u32 s36, s36, {WS_QB:#x}""")
    for kk in range(16):
        a(f"    buffer_load_dwordx4 {ar(4*kk)}, v5, s[24:27], s36 offen offset:{kk*64}")
    for t in range(4):
        vA = 12 + (t % 2)
        vT = 14 + (t % 2)
        a(f"    s_waitcnt vmcnt({16 if t in (1,2) else 0})")
        a("    s_barrier")
        stamp(a, t)
        def rd(n):
            kk, sub = n // 2, n % 2
            a(f"    ds_read_b128 {vr(40+4*(n%8))}, v{vA} offset:{sub*16*RS+kk*64}")
        for n in range(8):
            rd(n)
        for n in range(32):
            kk, sub = n // 2, n % 2
            a(f"    s_waitcnt lgkmcnt({min(7, 31-n)})")
            cc = "0" if kk == 0 else vr(32+4*sub)
            a(f"    v_mfma_f32_16x16x32_bf16 {vr(32+4*sub)}, {vr(40+4*(n%8))}, {ar(4*kk)}, {cc}")
            if n + 8 < 32:
                rd(n + 8)
        def trd(ct):
            a(f"    ds_read_b64_tr_b16 {vr(72+4*(ct%8),2)}, v{vT} offset:{ct*32}")
            a(f"    ds_read_b64_tr_b16 {vr(74+4*(ct%8),2)}, v{vT} offset:{16*RS+ct*32}")
        for ct in range(6):
            trd(ct)
        a("    s_nop 3")
        a("""    v_max3_f32 v16, v32, v33, v34
    v_max3_f32 v16, v16, v35, v36
    v_max3_f32 v16, v16, v37, v38
    v_max_f32 v16, v16, v39""")
        xreduce(a, "v_max_f32", 16, 17)
        a("""    v_max_f32 v16, v16, v10
    v_sub_f32 v17, v10, v16
    v_mul_f32 v17, s33, v17
    v_exp_f32 v17, v17
    v_mov_b32 v10, v16
    v_mul_f32 v16, s33, v16""")
        for r in range(32, 40):
            a(f"    v_fma_f32 v{r}, v{r}, s33, -v16")
        for r in range(32, 40):
            a(f"    v_exp_f32 v{r}, v{r}")
        a("    v_mul_f32 v11, v11, v17")
        for r in range(32, 40):
            a(f"    v_add_f32 v11, v11, v{r}")
        for q in range(4):
            a(f"    v_cvt_pk_bf16_f32 v{104+q}, v{32+2*q}, v{33+2*q}")
        for r in range(128, 256):
            a(f"    v_mul_f32 v{r}, v{r}, v17")
        a("    s_nop 1")
        for ct in range(32):
            rem = min(5, 31 - ct)
            a(f"    s_waitcnt lgkmcnt({2*rem})")
            a(f"    v_mfma_f32_16x16x32_bf16 {vr(128+4*ct)}, {vr(72+4*(ct%8))}, v[104:107], {vr(128+4*ct)}")
            if ct + 6 < 32:
                trd(ct + 6)
        if t < 3:
            a("    s_barrier")
        if t < 2:
            dma(t + 2)
    stamp(a, 4)
    a("    s_nop 7\n    s_nop 3")
    xreduce(a, "v_add_f32", 11, 17)
    a(f"""
    s_barrier
    v_lshlrev_b32 v16, 4, v1
    s_lshl_b32 s47, s42, 15
    v_add_u32 v16, s47, v16
    s_lshl_b32 s46, s42, 9
    v_lshlrev_b32 v18, 3, v1
    v_add_u32 v18, s46, v18
    v_add_u32 v18, 65536, v18
    s_cmp_eq_u32 s43, 0
    s_cbranch_scc1 Lb_recv""")
    for ct in range(32):
        a(f"    ds_write_b128 v16, {vr(128+4*ct)} offset:{ct*1024}")
    a(f"""
    ds_write_b64 v18, v[10:11]
    s_waitcnt lgkmcnt(0)
    s_barrier
    s_branch Lb_sig
Lb_recv:
    s_barrier
    ds_read_b64 v[20:21], v18
    s_waitcnt lgkmcnt(0)
    v_max_f32 v22, v10, v20
    v_sub_f32 v23, v10, v22
    v_sub_f32 v24, v20, v22
    v_mul_f32 v23, s33, v23
    v_mul_f32 v24, s33, v24
    v_exp_f32 v23, v23
    v_exp_f32 v24, v24
    s_nop 0
    v_mul_f32 v11, v11, v23
    v_fma_f32 v11, v21, v24, v11
    v_mul_f32 v10, s33, v22
    v_lshlrev_b32 v19, 11, v3
    v_lshl_add_u32 v19, v2, 4, v19
    s_lshl_b32 s46, s3, 16
    s_lshl_b32 s47, s42, 15
    s_add_u32 s46, s46, s47
    s_add_u32 s46, s46, {WS_PBO:#x}""")
    for g in range(4):
        for q in range(8):
            a(f"    ds_read_b128 {vr(40+4*q)}, v16 offset:{(g*8+q)*1024}")
        a("    s_waitcnt lgkmcnt(0)")
        for q in range(8):
            ct = g*8+q
            for i in range(4):
                a(f"    v_mul_f32 v{40+4*q+i}, v{40+4*q+i}, v24")
                a(f"    v_fma_f32 v{128+4*ct+i}, v{128+4*ct+i}, v23, v{40+4*q+i}")
            a(f"    buffer_store_dwordx4 {vr(128+4*ct)}, v19, s[24:27], s46 offen offset:{ct*64} sc1")
    a(f"""
    v_lshlrev_b32 v19, 8, v3
    s_lshl_b32 s46, s34, 13
    s_lshl_b32 s47, s42, 12
    s_add_u32 s46, s46, s47
    s_lshl_b32 s47, s35, 3
    s_add_u32 s46, s46, s47
    s_add_u32 s46, s46, {WS_PBML:#x}
    v_cmp_gt_u32 vcc, 16, v1
    s_and_saveexec_b64 s[40:41], vcc
    buffer_store_dwordx2 v[10:11], v19, s[24:27], s46 offen sc1
    s_mov_b64 exec, s[40:41]
Lb_sig:""")
    signal(a, C_ATTB)
    a("    s_branch Lnext")

def lds_reduce4(a, accbase, ldsbase):
    a(f"""
    s_nop 7
    s_nop 3
    v_lshlrev_b32 v15, 9, v3
    v_lshl_add_u32 v15, v2, 7, v15
    s_lshl_b32 s38, s29, 11
    v_add_u32 v15, s38, v15
    v_cmp_gt_u32 vcc, 4, v3
    s_and_saveexec_b64 s[40:41], vcc""")
    for c in range(8):
        a(f"    ds_write_b128 v15, {vr(accbase+4*c)} offset:{ldsbase+c*16}")
    a(f"""
    s_mov_b64 exec, s[40:41]
    s_waitcnt lgkmcnt(0)
    s_barrier
    v_lshlrev_b32 v16, 2, v0
    ds_read_b32 v20, v16 offset:{ldsbase}
    ds_read_b32 v21, v16 offset:{ldsbase+2048}
    ds_read_b32 v22, v16 offset:{ldsbase+4096}
    ds_read_b32 v23, v16 offset:{ldsbase+6144}
    ds_read_b32 v24, v16 offset:{ldsbase+1024}
    ds_read_b32 v25, v16 offset:{ldsbase+3072}
    ds_read_b32 v26, v16 offset:{ldsbase+5120}
    ds_read_b32 v27, v16 offset:{ldsbase+7168}
    s_waitcnt lgkmcnt(0)
    v_add_f32 v20, v20, v21
    v_add_f32 v22, v22, v23
    v_add_f32 v20, v20, v22
    v_add_f32 v24, v24, v25
    v_add_f32 v26, v26, v27
    v_add_f32 v24, v24, v26""")

def job_e(a):
    a(f"""
    s_sub_u32 s3, s3, {J_E}
    s_lshr_b32 s28, s3, 7
    s_and_b32 s34, s3, 3
    s_bfe_u32 s3, s3, 0x50002
    s_cmp_eq_u32 s28, 1
    s_cbranch_scc1 Le_b""")
    a("""
    s_load_dwordx2 s[4:5], s[0:1], 32
    s_waitcnt lgkmcnt(0)""")
    srd(a, 12, 4, 5, 0x400000)
    a("""
    v_lshlrev_b32 v5, 13, v2
    v_lshl_add_u32 v5, v3, 4, v5
    s_lshl_b32 s36, s3, 17
    s_lshl_b32 s37, s29, 15
    s_add_u32 s36, s36, s37
    s_lshl_b32 s37, s34, 8
    s_add_u32 s36, s36, s37""")
    for i in range(8):
        if i == 4:
            a("    s_add_u32 s36, s36, 4096")
        a(f"    buffer_load_dwordx4 {vr(32+4*i)}, v5, s[12:15], s36 offen offset:{(i%4)*1024} nt")
    wait_counter(a, C_ATTA, NA)
    a(f"""
    v_mov_b32 v8, 0
    v_mov_b32 v9, 0
    v_mov_b32 v10, 0
    v_mov_b32 v11, 0
    v_lshlrev_b32 v6, 16, v3
    v_lshl_add_u32 v6, v2, 5, v6
    s_lshl_b32 s36, s3, 11
    s_lshl_b32 s37, s29, 7
    s_add_u32 s36, s36, s37
    s_add_u32 s36, s36, {WS_PAO:#x}
    v_lshlrev_b32 v7, 10, v3
    s_lshl_b32 s37, s3, 5
    s_add_u32 s37, s37, {WS_PAML:#x}
    v_cmp_gt_u32 vcc, 4, v3
    s_and_saveexec_b64 s[40:41], vcc""")
    for s in range(4):
        a(f"    buffer_load_dwordx4 {vr(64+8*s)}, v6, s[24:27], s36 offen offset:{s*512} sc1")
        a(f"    buffer_load_dwordx4 {vr(68+8*s)}, v6, s[24:27], s36 offen offset:{s*512+16} sc1")
    a(f"""
    buffer_load_dwordx4 v[96:99], v7, s[24:27], s37 offen sc1
    buffer_load_dwordx4 v[100:103], v7, s[24:27], s37 offen offset:16 sc1
    s_waitcnt vmcnt(0)
    v_max3_f32 v104, v96, v98, v100
    v_max_f32 v104, v104, v102
    v_sub_f32 v96, v96, v104
    v_sub_f32 v98, v98, v104
    v_sub_f32 v100, v100, v104
    v_sub_f32 v102, v102, v104
    v_exp_f32 v96, v96
    v_exp_f32 v98, v98
    v_exp_f32 v100, v100
    v_exp_f32 v102, v102
    s_nop 0
    v_mul_f32 v105, v96, v97
    v_fma_f32 v105, v98, v99, v105
    v_fma_f32 v105, v100, v101, v105
    v_fma_f32 v105, v102, v103, v105
    v_rcp_f32 v105, v105
    s_nop 0
    v_mul_f32 v96, v96, v105
    v_mul_f32 v98, v98, v105
    v_mul_f32 v100, v100, v105
    v_mul_f32 v102, v102, v105""")
    for e in range(8):
        a(f"    v_mul_f32 v{64+e}, v{64+e}, v96")
        a(f"    v_fma_f32 v{64+e}, v{72+e}, v98, v{64+e}")
        a(f"    v_fma_f32 v{64+e}, v{80+e}, v100, v{64+e}")
        a(f"    v_fma_f32 v{64+e}, v{88+e}, v102, v{64+e}")
    for q in range(4):
        a(f"    v_cvt_pk_bf16_f32 v{8+q}, v{64+2*q}, v{65+2*q}")
    a("""
    s_mov_b64 exec, s[40:41]
    s_waitcnt vmcnt(0)""")
    pv_block(a, 32, 112, 8, 64, 30, 31, True)
    lds_reduce4(a, 64, 0)
    a(f"""
    v_lshrrev_b32 v17, 7, v0
    v_bfe_u32 v18, v0, 5, 2
    v_bfe_u32 v19, v0, 2, 3
    v_and_b32 v21, 3, v0
    v_lshlrev_b32 v18, 5, v18
    v_lshl_add_u32 v18, v21, 3, v18
    v_add_u32 v18, v18, v19
    v_lshl_add_u32 v18, v17, 10, v18
    v_lshlrev_b32 v18, 2, v18
    s_lshl_b32 s38, s34, 9
    s_add_u32 s38, s38, {WS_ACC:#x}
    buffer_atomic_add_f32 v20, v18, s[24:27], s38 offen sc1
    s_add_u32 s38, s38, 8192
    buffer_atomic_add_f32 v24, v18, s[24:27], s38 offen sc1
    s_branch Le_fin
Le_b:""")
    a("""
    s_load_dwordx2 s[4:5], s[0:1], 72
    s_load_dwordx2 s[6:7], s[0:1], 80
    s_waitcnt lgkmcnt(0)""")
    srd(a, 12, 4, 5, 0x400000)
    srd(a, 16, 6, 7, 0x400000)
    a("""
    v_lshlrev_b32 v5, 16, v2
    v_lshl_add_u32 v5, v3, 4, v5
    s_lshl_b32 s36, s34, 20
    s_lshl_b32 s37, s29, 18
    s_add_u32 s36, s36, s37
    s_lshl_b32 s37, s3, 8
    s_add_u32 s36, s36, s37""")
    for i in range(8):
        a(f"    buffer_load_dwordx4 {vr(96+4*i)}, v5, s[12:15], s36 offen nt")
        if i < 7:
            a("    s_add_u32 s36, s36, 8192")
    a("""
    v_lshlrev_b32 v5, 13, v2
    v_lshl_add_u32 v5, v3, 4, v5
    s_lshl_b32 s36, s3, 17
    s_lshl_b32 s37, s29, 8
    s_add_u32 s36, s36, s37""")
    for kb in range(4):
        for i in range(8):
            a(f"    buffer_load_dwordx4 {vr(128+32*kb+4*i)}, v5, s[16:19], s36 offen offset:{(i%4)*1024}")
            if i == 3:
                a("    s_add_u32 s36, s36, 4096")
            if i == 7 and kb < 3:
                a("    s_add_u32 s36, s36, 28672")
    wait_counter(a, C_ATTB, NB)
    a(f"""
    v_and_b32 v5, 31, v1
    v_lshlrev_b32 v5, 3, v5
    s_lshl_b32 s36, s29, 13
    s_lshl_b32 s37, s3, 8
    s_add_u32 s36, s36, s37
    s_add_u32 s36, s36, {WS_PBML:#x}
    buffer_load_dwordx2 v[8:9], v5, s[24:27], s36 offen sc1
    v_lshlrev_b32 v6, 3, v1
    s_lshl_b32 s36, s29, 21
    s_lshl_b32 s37, s3, 11
    s_add_u32 s36, s36, s37
    s_lshl_b32 s37, s34, 9
    s_add_u32 s36, s36, s37
    s_add_u32 s36, s36, {WS_PBO:#x}""")
    for s in range(32):
        a(f"    buffer_load_dwordx2 {vr(32+2*s,2)}, v6, s[24:27], s36 offen sc1")
        if s < 31:
            a(f"    s_add_u32 s36, s36, 65536")
    a("    s_waitcnt vmcnt(32)")
    a("    v_mov_b32 v10, v8")
    allreduce16(a, "v_max_f32", 10, 11)
    swap16(a, "v_max_f32", 10, 11)
    a("""    v_sub_f32 v10, v8, v10
    v_exp_f32 v10, v10
    s_nop 0
    v_mul_f32 v12, v10, v9""")
    allreduce16(a, "v_add_f32", 12, 11)
    swap16(a, "v_add_f32", 12, 11)
    a("""    v_rcp_f32 v12, v12
    s_nop 0
    v_mul_f32 v10, v10, v12
    s_nop 1""")
    for s in range(32):
        a(f"    v_readlane_b32 s{64+s}, v10, {s}")
    a("    s_nop 1\n    s_waitcnt vmcnt(0)")
    a("    v_mul_f32 v13, s64, v32\n    v_mul_f32 v14, s64, v33")
    for s in range(1, 32):
        a(f"    v_fma_f32 v13, v{32+2*s}, s{64+s}, v13")
        a(f"    v_fma_f32 v14, v{33+2*s}, s{64+s}, v14")
    a("""
    v_cvt_pk_bf16_f32 v13, v13, v14
    s_lshl_b32 s38, s29, 8
    v_lshlrev_b32 v15, 2, v1
    v_add_u32 v15, s38, v15
    ds_write_b32 v15, v13
    s_waitcnt lgkmcnt(0)
    s_barrier
    v_mov_b32 v8, 0
    v_mov_b32 v9, 0
    v_mov_b32 v10, 0
    v_mov_b32 v11, 0
    v_lshlrev_b32 v15, 8, v3
    v_lshl_add_u32 v15, v2, 4, v15
    s_lshl_b32 s38, s29, 6
    v_add_u32 v17, s38, v15
    v_cmp_gt_u32 vcc, 4, v3
    s_and_saveexec_b64 s[40:41], vcc
    ds_read_b128 v[8:11], v17
    s_mov_b64 exec, s[40:41]
    s_waitcnt lgkmcnt(0)""")
    pv_block(a, 96, 24, 8, 32, 30, 31, True)
    lds_reduce4(a, 32, 1024)
    a("""
    v_cvt_pk_bf16_f32 v20, v20, v20
    v_cvt_pk_bf16_f32 v24, v24, v24
    v_lshrrev_b32 v17, 7, v0
    v_bfe_u32 v18, v0, 5, 2
    v_bfe_u32 v19, v0, 2, 3
    v_and_b32 v21, 3, v0
    v_lshlrev_b32 v18, 5, v18
    v_lshl_add_u32 v18, v21, 3, v18
    v_add_u32 v18, v18, v19
    v_lshl_add_u32 v18, v17, 7, v18
    v_lshlrev_b32 v18, 1, v18
    ds_write_b16 v18, v20 offset:9216
    ds_write_b16 v18, v24 offset:9728
    s_waitcnt lgkmcnt(0)
    s_barrier""")
    for r in range(16):
        a(f"    v_mov_b32 v{64+r}, 0")
    a("""
    v_lshlrev_b32 v15, 8, v3
    v_lshl_add_u32 v15, v2, 4, v15
    v_cmp_gt_u32 vcc, 4, v3
    s_and_saveexec_b64 s[40:41], vcc""")
    for kb in range(4):
        a(f"    ds_read_b128 {vr(64+4*kb)}, v15 offset:{9216+kb*64}")
    a("""
    s_mov_b64 exec, s[40:41]
    s_waitcnt lgkmcnt(0)""")
    for kb in range(4):
        pv_block(a, 128+32*kb, 24, 64+4*kb, 32, 30, 31, kb == 0)
    a(f"""
    s_nop 7
    s_nop 3
    s_barrier
    v_lshlrev_b32 v15, 11, v3
    v_lshl_add_u32 v15, v2, 7, v15
    s_lshl_b32 s39, s29, 9
    v_add_u32 v15, s39, v15
    v_cmp_gt_u32 vcc, 4, v3
    s_and_saveexec_b64 s[40:41], vcc""")
    for c in range(8):
        a(f"    ds_write_b128 v15, {vr(32+4*c)} offset:{c*16}")
    a(f"""
    s_mov_b64 exec, s[40:41]
    s_waitcnt lgkmcnt(0)
    s_barrier
    v_and_b32 v17, 7, v0
    v_bfe_u32 v18, v0, 3, 2
    v_and_b32 v19, 0xe0, v0
    v_lshl_add_u32 v19, v17, 2, v19
    v_add_u32 v19, v19, v18
    v_lshlrev_b32 v19, 2, v19
    v_lshlrev_b32 v18, 2, v0""")
    for q in range(8):
        a(f"    ds_read_b32 v{40+q}, v19 offset:{((q>>1)*512+(q&1)*256)*4}")
    a(f"    s_mov_b32 s38, {WS_ACC:#x}")
    a("    s_waitcnt lgkmcnt(0)")
    for q in range(8):
        a(f"    buffer_atomic_add_f32 v{40+q}, v18, s[24:27], s38 offen offset:{2048+(q&1)*1024} sc1")
        if q & 1:
            a("    s_add_u32 s38, s38, 4096")
    a("""
    s_mov_b64 exec, s[40:41]
Le_fin:""")
    lab = a.label("fin")
    a(f"""    s_waitcnt vmcnt(0)
    s_barrier
    s_cmp_lg_u32 s29, 0
    s_cbranch_scc1 Le_w
    v_mov_b32 v250, 1
    v_mov_b32 v251, {C_EPI*4}
    s_mov_b64 s[40:41], exec
    s_mov_b64 exec, 1
    buffer_atomic_add v250, v251, s[96:99], 0 offen sc0 sc1
    s_waitcnt vmcnt(0)
    v_mov_b32 v251, {LDS_TICKET}
    ds_write_b32 v251, v250""")
    prof_store(a)
    a(f"""    s_mov_b64 exec, s[40:41]
    s_waitcnt lgkmcnt(0)
Le_w:
    s_barrier
    v_mov_b32 v251, {LDS_TICKET}
    ds_read_b32 v250, v251
    s_waitcnt lgkmcnt(0)
    v_readfirstlane_b32 s40, v250
    s_barrier
    s_cmp_lg_u32 s40, {NEPI-1}
    s_cbranch_scc1 Lnext
    s_load_dwordx2 s[4:5], s[0:1], 88
    s_waitcnt lgkmcnt(0)""")
    srd(a, 12, 4, 5, 8192)
    a(f"""
    v_lshlrev_b32 v5, 6, v0
    s_mov_b32 s36, {WS_ACC:#x}
    buffer_load_dwordx4 v[8:11], v5, s[24:27], s36 offen sc1
    buffer_load_dwordx4 v[12:15], v5, s[24:27], s36 offen offset:16 sc1
    buffer_load_dwordx4 v[16:19], v5, s[24:27], s36 offen offset:32 sc1
    buffer_load_dwordx4 v[20:23], v5, s[24:27], s36 offen offset:48 sc1
    s_waitcnt vmcnt(0)""")
    for q in range(8):
        a(f"    v_cvt_pk_bf16_f32 v{24+q}, v{8+2*q}, v{9+2*q}")
    a("""
    v_lshlrev_b32 v5, 5, v0
    buffer_store_dwordx4 v[24:27], v5, s[12:15], 0 offen
    buffer_store_dwordx4 v[28:31], v5, s[12:15], 0 offen offset:16
    s_branch Lnext""")

def prk(a):
    a("""
.p2align 8
.type pr_kernel,@function
pr_kernel:
    s_cmp_ge_u32 s2, 192
    s_cbranch_scc1 Lpr_end
    s_load_dwordx2 s[10:11], s[0:1], 104
    v_and_b32 v1, 63, v0
    v_lshrrev_b32 v2, 4, v1
    v_and_b32 v3, 15, v1
    v_lshrrev_b32 v4, 6, v0
    s_nop 0
    v_readfirstlane_b32 s29, v4
    s_mov_b32 s30, 0x05040100
    s_mov_b32 s31, 0x07060302
    s_mov_b32 s3, s2
    s_waitcnt lgkmcnt(0)""")
    srd(a, 24, 10, 11, WS_SIZE)
    a("""
    s_cmp_lt_u32 s3, 128
    s_cbranch_scc1 Lpr_b""")
    global signal
    old = signal
    signal = lambda *x, **k: None
    job_l1(a)
    a("Lpr_b:")
    job_l2(a)
    signal = old
    a("""
Lpr_end:
    s_endpgm""")

def main():
    a = Asm()
    launches = [("pr_kernel", 192, 256, 10240), ("mk_kernel", 256, 256, LDS_BYTES)]
    header(a, launches)
    prk(a)
    mk(a)
    a('.section .rodata,"a"')
    a(".p2align 6")
    a(""".amdhsa_kernel pr_kernel
  .amdhsa_next_free_vgpr 320
  .amdhsa_next_free_sgpr 102
  .amdhsa_accum_offset 256
  .amdhsa_group_segment_fixed_size 0
  .amdhsa_kernarg_size 112
  .amdhsa_user_sgpr_count 2
  .amdhsa_user_sgpr_kernarg_segment_ptr 1
  .amdhsa_system_sgpr_workgroup_id_x 1
.end_amdhsa_kernel""")
    a(""".amdhsa_kernel mk_kernel
  .amdhsa_next_free_vgpr 512
  .amdhsa_next_free_sgpr 102
  .amdhsa_accum_offset 256
  .amdhsa_group_segment_fixed_size 0
  .amdhsa_kernarg_size 112
  .amdhsa_user_sgpr_count 2
  .amdhsa_user_sgpr_kernarg_segment_ptr 1
  .amdhsa_system_sgpr_workgroup_id_x 1
.end_amdhsa_kernel""")
    return a.text()

if __name__ == "__main__":
    out = sys.argv[1] if len(sys.argv) > 1 else "mk.s"
    if len(sys.argv) > 2: PROF = True
    open(out, "w").write(main())
```

```python
from gen import *

def allreduce16(a, op, x, tmp):
    for r in (1, 2, 4, 8):
        a(f"    s_nop 1")
        a(f"    v_mov_b32_dpp v{tmp}, v{x} row_ror:{r} row_mask:0xf bank_mask:0xf")
        a(f"    {op} v{x}, v{x}, v{tmp}")

def swap16(a, op, x, tmp):
    a(f"""    v_mov_b32 v{tmp}, v{x}
    s_nop 1
    v_permlane16_swap_b32 v{x}, v{tmp}
    s_nop 1
    {op} v{x}, v{x}, v{tmp}""")

def k3(a):
    a("""
.p2align 8
.type k3_kernel,@function
k3_kernel:
    s_cmp_ge_u32 s2, 256
    s_cbranch_scc1 Lk3_end
    s_lshr_b32 s28, s2, 7
    s_bfe_u32 s3, s2, 0x50002
    s_and_b32 s34, s2, 3
    s_and_b32 s35, s2, 127
    s_load_dwordx2 s[10:11], s[0:1], 104
    s_load_dwordx2 s[8:9], s[0:1], 96
    v_and_b32 v1, 63, v0
    v_lshrrev_b32 v2, 4, v1
    v_and_b32 v3, 15, v1
    v_lshrrev_b32 v4, 6, v0
    s_nop 0
    v_readfirstlane_b32 s29, v4
    s_mov_b32 s30, 0x05040100
    s_mov_b32 s31, 0x07060302
    s_waitcnt lgkmcnt(0)
    s_mov_b32 s96, s8
    s_mov_b32 s97, s9
    s_mov_b32 s98, 256
    s_mov_b32 s99, 0x00020000
    s_cmp_eq_u32 s28, 1
    s_cbranch_scc1 Lk3_b""")
    k3a(a)
    a("Lk3_b:")
    k3b(a)
    a("""
Lk3_end:
    s_endpgm""")

def lds_reduce4_and(a, accbase, ldsbase):
    a(f"""
    s_nop 7
    s_nop 3
    v_lshlrev_b32 v15, 9, v3
    v_lshl_add_u32 v15, v2, 7, v15
    s_lshl_b32 s38, s29, 11
    v_add_u32 v15, s38, v15
    v_cmp_gt_u32 vcc, 4, v3
    s_and_saveexec_b64 s[40:41], vcc""")
    for c in range(8):
        a(f"    ds_write_b128 v15, {vr(accbase+4*c)} offset:{ldsbase+c*16}")
    a(f"""
    s_mov_b64 exec, s[40:41]
    s_waitcnt lgkmcnt(0)
    s_barrier
    v_lshlrev_b32 v16, 2, v0
    ds_read_b32 v20, v16 offset:{ldsbase}
    ds_read_b32 v21, v16 offset:{ldsbase+2048}
    ds_read_b32 v22, v16 offset:{ldsbase+4096}
    ds_read_b32 v23, v16 offset:{ldsbase+6144}
    ds_read_b32 v24, v16 offset:{ldsbase+1024}
    ds_read_b32 v25, v16 offset:{ldsbase+3072}
    ds_read_b32 v26, v16 offset:{ldsbase+5120}
    ds_read_b32 v27, v16 offset:{ldsbase+7168}
    s_waitcnt lgkmcnt(0)
    v_add_f32 v20, v20, v21
    v_add_f32 v22, v22, v23
    v_add_f32 v20, v20, v22
    v_add_f32 v24, v24, v25
    v_add_f32 v26, v26, v27
    v_add_f32 v24, v24, v26""")

def k3a(a):
    a("""
    s_load_dwordx2 s[4:5], s[0:1], 32
    s_waitcnt lgkmcnt(0)""")
    srd(a, 12, 4, 5, 0x400000)
    srd(a, 24, 10, 11, WS_SIZE)
    a("""
    v_lshlrev_b32 v5, 13, v2
    v_lshl_add_u32 v5, v3, 4, v5
    s_lshl_b32 s36, s3, 17
    s_lshl_b32 s37, s29, 15
    s_add_u32 s36, s36, s37
    s_lshl_b32 s37, s34, 8
    s_add_u32 s36, s36, s37""")
    for i in range(8):
        if i == 4:
            a("    s_add_u32 s36, s36, 4096")
        a(f"    buffer_load_dwordx4 {vr(32+4*i)}, v5, s[12:15], s36 offen offset:{(i%4)*1024} nt")
    a(f"""
    v_mov_b32 v8, 0
    v_mov_b32 v9, 0
    v_mov_b32 v10, 0
    v_mov_b32 v11, 0
    v_lshlrev_b32 v6, 16, v3
    v_lshl_add_u32 v6, v2, 5, v6
    s_lshl_b32 s36, s3, 11
    s_lshl_b32 s37, s29, 7
    s_add_u32 s36, s36, s37
    s_add_u32 s36, s36, {WS_PAO:#x}
    v_lshlrev_b32 v7, 10, v3
    s_lshl_b32 s37, s3, 5
    s_add_u32 s37, s37, {WS_PAML:#x}
    v_cmp_gt_u32 vcc, 4, v3
    s_and_saveexec_b64 s[40:41], vcc
    s_cbranch_execz Lk3a_skip""")
    for s in range(4):
        a(f"    buffer_load_dwordx4 {vr(64+8*s)}, v6, s[24:27], s36 offen offset:{s*512}")
        a(f"    buffer_load_dwordx4 {vr(68+8*s)}, v6, s[24:27], s36 offen offset:{s*512+16}")
    a(f"""
    buffer_load_dwordx4 v[96:99], v7, s[24:27], s37 offen
    buffer_load_dwordx4 v[100:103], v7, s[24:27], s37 offen offset:16
    s_waitcnt vmcnt(0)
    v_max3_f32 v104, v96, v98, v100
    v_max_f32 v104, v104, v102
    v_sub_f32 v96, v96, v104
    v_sub_f32 v98, v98, v104
    v_sub_f32 v100, v100, v104
    v_sub_f32 v102, v102, v104
    v_exp_f32 v96, v96
    v_exp_f32 v98, v98
    v_exp_f32 v100, v100
    v_exp_f32 v102, v102
    s_nop 0
    v_mul_f32 v105, v96, v97
    v_fma_f32 v105, v98, v99, v105
    v_fma_f32 v105, v100, v101, v105
    v_fma_f32 v105, v102, v103, v105
    v_rcp_f32 v105, v105
    s_nop 0
    v_mul_f32 v96, v96, v105
    v_mul_f32 v98, v98, v105
    v_mul_f32 v100, v100, v105
    v_mul_f32 v102, v102, v105""")
    for e in range(8):
        a(f"    v_mul_f32 v{64+e}, v{64+e}, v96")
        a(f"    v_fma_f32 v{64+e}, v{72+e}, v98, v{64+e}")
        a(f"    v_fma_f32 v{64+e}, v{80+e}, v100, v{64+e}")
        a(f"    v_fma_f32 v{64+e}, v{88+e}, v102, v{64+e}")
    for q in range(4):
        a(f"    v_cvt_pk_bf16_f32 v{8+q}, v{64+2*q}, v{65+2*q}")
    a("""
Lk3a_skip:
    s_mov_b64 exec, s[40:41]
    s_waitcnt vmcnt(0)""")
    pv_block(a, 32, 112, 8, 64, 30, 31, True)
    lds_reduce4_and(a, 64, 0)
    a(f"""
    v_lshrrev_b32 v17, 7, v0
    v_bfe_u32 v18, v0, 5, 2
    v_bfe_u32 v19, v0, 2, 3
    v_and_b32 v21, 3, v0
    v_lshlrev_b32 v18, 5, v18
    v_lshl_add_u32 v18, v21, 3, v18
    v_add_u32 v18, v18, v19
    v_lshl_add_u32 v18, v17, 10, v18
    v_lshlrev_b32 v18, 2, v18
    s_lshl_b32 s38, s34, 9
    s_add_u32 s38, s38, 0xA00000
    buffer_atomic_add_f32 v20, v18, s[24:27], s38 offen
    s_add_u32 s38, s38, 8192
    buffer_atomic_add_f32 v24, v18, s[24:27], s38 offen
    s_branch Lk3_fin""")

def k3b(a):
    a("""
    s_load_dwordx2 s[4:5], s[0:1], 72
    s_load_dwordx2 s[6:7], s[0:1], 80
    s_waitcnt lgkmcnt(0)""")
    srd(a, 12, 4, 5, 0x400000)
    srd(a, 16, 6, 7, 0x400000)
    srd(a, 24, 10, 11, WS_SIZE)
    a(f"""
    v_and_b32 v5, 31, v1
    v_lshlrev_b32 v5, 3, v5
    s_lshl_b32 s36, s29, 13
    s_lshl_b32 s37, s3, 8
    s_add_u32 s36, s36, s37
    s_add_u32 s36, s36, {WS_PBML:#x}
    buffer_load_dwordx2 v[8:9], v5, s[24:27], s36 offen
    v_lshlrev_b32 v6, 3, v1
    s_lshl_b32 s36, s29, 21
    s_lshl_b32 s37, s3, 11
    s_add_u32 s36, s36, s37
    s_lshl_b32 s37, s34, 9
    s_add_u32 s36, s36, s37
    s_add_u32 s36, s36, {WS_PBO:#x}""")
    for s in range(32):
        a(f"    buffer_load_dwordx2 {vr(32+2*s,2)}, v6, s[24:27], s36 offen")
        if s < 31:
            a(f"    s_add_u32 s36, s36, 65536")
    a("""
    v_lshlrev_b32 v5, 16, v2
    v_lshl_add_u32 v5, v3, 4, v5
    s_lshl_b32 s36, s34, 20
    s_lshl_b32 s37, s29, 18
    s_add_u32 s36, s36, s37
    s_lshl_b32 s37, s3, 8
    s_add_u32 s36, s36, s37""")
    for i in range(8):
        a(f"    buffer_load_dwordx4 {vr(96+4*i)}, v5, s[12:15], s36 offen nt")
        if i < 7:
            a("    s_add_u32 s36, s36, 8192")
    a("""
    v_lshlrev_b32 v5, 13, v2
    v_lshl_add_u32 v5, v3, 4, v5
    s_lshl_b32 s36, s3, 17
    s_lshl_b32 s37, s29, 8
    s_add_u32 s36, s36, s37""")
    for kb in range(4):
        for i in range(8):
            a(f"    buffer_load_dwordx4 {vr(128+32*kb+4*i)}, v5, s[16:19], s36 offen offset:{(i%4)*1024}")
            if i == 3:
                a("    s_add_u32 s36, s36, 4096")
            if i == 7 and kb < 3:
                a("    s_add_u32 s36, s36, 28672")
    a("    s_waitcnt vmcnt(63)")
    return_point = None
    a("    v_mov_b32 v10, v8")
    allreduce16(a, "v_max_f32", 10, 11)
    swap16(a, "v_max_f32", 10, 11)
    a("""    v_sub_f32 v10, v8, v10
    v_exp_f32 v10, v10
    s_nop 0
    v_mul_f32 v12, v10, v9""")
    allreduce16(a, "v_add_f32", 12, 11)
    swap16(a, "v_add_f32", 12, 11)
    a("""    v_rcp_f32 v12, v12
    s_nop 0
    v_mul_f32 v10, v10, v12
    s_nop 1""")
    for s in range(32):
        a(f"    v_readlane_b32 s{64+s}, v10, {s}")
    a("    s_nop 1\n    s_waitcnt vmcnt(40)")
    a("    v_mul_f32 v13, s64, v32\n    v_mul_f32 v14, s64, v33")
    for s in range(1, 32):
        a(f"    v_fma_f32 v13, v{32+2*s}, s{64+s}, v13")
        a(f"    v_fma_f32 v14, v{33+2*s}, s{64+s}, v14")
    a("""
    v_cvt_pk_bf16_f32 v13, v13, v14
    s_lshl_b32 s38, s29, 8
    v_lshlrev_b32 v15, 2, v1
    v_add_u32 v15, s38, v15
    ds_write_b32 v15, v13
    s_waitcnt lgkmcnt(0)
    s_barrier
    v_mov_b32 v8, 0
    v_mov_b32 v9, 0
    v_mov_b32 v10, 0
    v_mov_b32 v11, 0
    v_lshlrev_b32 v15, 8, v3
    v_lshl_add_u32 v15, v2, 4, v15
    s_lshl_b32 s38, s29, 6
    v_add_u32 v17, s38, v15
    v_cmp_gt_u32 vcc, 4, v3
    s_and_saveexec_b64 s[40:41], vcc
    ds_read_b128 v[8:11], v17
    s_mov_b64 exec, s[40:41]
    s_waitcnt lgkmcnt(0) vmcnt(32)""")
    pv_block(a, 96, 24, 8, 32, 30, 31, True)
    lds_reduce4_and(a, 32, 1024)
    a("""
    v_cvt_pk_bf16_f32 v20, v20, v20
    v_cvt_pk_bf16_f32 v24, v24, v24
    v_lshrrev_b32 v17, 7, v0
    v_bfe_u32 v18, v0, 5, 2
    v_bfe_u32 v19, v0, 2, 3
    v_and_b32 v21, 3, v0
    v_lshlrev_b32 v18, 5, v18
    v_lshl_add_u32 v18, v21, 3, v18
    v_add_u32 v18, v18, v19
    v_lshl_add_u32 v18, v17, 7, v18
    v_lshlrev_b32 v18, 1, v18
    ds_write_b16 v18, v20 offset:9216
    ds_write_b16 v18, v24 offset:9728
    s_waitcnt lgkmcnt(0)
    s_barrier""")
    for r in range(16):
        a(f"    v_mov_b32 v{64+r}, 0")
    a("""
    v_lshlrev_b32 v15, 8, v3
    v_lshl_add_u32 v15, v2, 4, v15
    v_cmp_gt_u32 vcc, 4, v3
    s_and_saveexec_b64 s[40:41], vcc""")
    for kb in range(4):
        a(f"    ds_read_b128 {vr(64+4*kb)}, v15 offset:{9216+kb*64}")
    a("""
    s_mov_b64 exec, s[40:41]
    s_waitcnt lgkmcnt(0) vmcnt(0)""")
    for kb in range(4):
        pv_block(a, 128+32*kb, 24, 64+4*kb, 32, 30, 31, kb == 0)
    a(f"""
    s_nop 7
    s_nop 3
    s_barrier
    v_lshlrev_b32 v15, 11, v3
    v_lshl_add_u32 v15, v2, 7, v15
    s_lshl_b32 s39, s29, 9
    v_add_u32 v15, s39, v15
    v_cmp_gt_u32 vcc, 4, v3
    s_and_saveexec_b64 s[40:41], vcc""")
    for c in range(8):
        a(f"    ds_write_b128 v15, {vr(32+4*c)} offset:{c*16}")
    a(f"""
    s_mov_b64 exec, s[40:41]
    s_waitcnt lgkmcnt(0)
    s_barrier
    v_and_b32 v17, 7, v0
    v_bfe_u32 v18, v0, 3, 2
    v_and_b32 v19, 0xe0, v0
    v_lshl_add_u32 v19, v17, 2, v19
    v_add_u32 v19, v19, v18
    v_lshlrev_b32 v19, 2, v19
    v_lshlrev_b32 v18, 2, v0""")
    for q in range(8):
        a(f"    ds_read_b32 v{40+q}, v19 offset:{((q>>1)*512+(q&1)*256)*4}")
    a(f"    s_mov_b32 s38, 0xA00000")
    a("    s_waitcnt lgkmcnt(0)")
    for q in range(8):
        a(f"    buffer_atomic_add_f32 v{40+q}, v18, s[24:27], s38 offen offset:{2048+(q&1)*1024}")
        if q & 1:
            a("    s_add_u32 s38, s38, 4096")
    a(f"""
Lk3_fin:
    s_waitcnt vmcnt(0)
    s_barrier
    s_cmp_lg_u32 s29, 0
    s_cbranch_scc1 Lk3_w
    v_mov_b32 v250, 1
    v_mov_b32 v251, 0
    s_mov_b64 s[40:41], exec
    s_mov_b64 exec, 1
    buffer_atomic_add v250, v251, s[96:99], 0 offen sc0
    s_waitcnt vmcnt(0)
    v_mov_b32 v251, 10240
    ds_write_b32 v251, v250
    s_mov_b64 exec, s[40:41]
    s_waitcnt lgkmcnt(0)
Lk3_w:
    s_barrier
    v_mov_b32 v251, 10240
    ds_read_b32 v250, v251
    s_waitcnt lgkmcnt(0)
    v_readfirstlane_b32 s40, v250
    s_cmp_lg_u32 s40, 255
    s_cbranch_scc1 Lk3_end
    s_load_dwordx2 s[4:5], s[0:1], 88
    s_waitcnt lgkmcnt(0)""")
    srd(a, 12, 4, 5, 8192)
    a(f"""
    v_lshlrev_b32 v5, 6, v0
    s_mov_b32 s36, 0xA00000
    buffer_load_dwordx4 v[8:11], v5, s[24:27], s36 offen sc1
    buffer_load_dwordx4 v[12:15], v5, s[24:27], s36 offen offset:16 sc1
    buffer_load_dwordx4 v[16:19], v5, s[24:27], s36 offen offset:32 sc1
    buffer_load_dwordx4 v[20:23], v5, s[24:27], s36 offen offset:48 sc1
    s_waitcnt vmcnt(0)""")
    for q in range(8):
        a(f"    v_cvt_pk_bf16_f32 v{24+q}, v{8+2*q}, v{9+2*q}")
    a("""
    v_lshlrev_b32 v5, 5, v0
    buffer_store_dwordx4 v[24:27], v5, s[12:15], 0 offen
    buffer_store_dwordx4 v[28:31], v5, s[12:15], 0 offen offset:16
    s_endpgm""")

def k4(a):
    a(f"""
.p2align 8
.type k4_kernel,@function
k4_kernel:
    s_cmp_ge_u32 s2, 40
    s_cbranch_scc1 Lk4_end
    s_load_dwordx2 s[10:11], s[0:1], 104
    s_load_dwordx2 s[8:9], s[0:1], 88
    s_waitcnt lgkmcnt(0)""")
    srd(a, 24, 10, 11, WS_SIZE)
    srd(a, 20, 8, 9, 8192)
    a(f"""
    s_cmp_ge_u32 s2, 8
    s_cbranch_scc1 Lk4_b
    ; A: o = wg*256 + t ; b = o>>9 ; n = o&511
    s_lshl_b32 s3, s2, 8
    v_add_u32 v1, s3, v0
    v_lshrrev_b32 v2, 9, v1
    v_and_b32 v3, 511, v1
    v_and_b32 v4, 7, v3
    v_bfe_u32 v5, v3, 3, 2
    v_bfe_u32 v6, v3, 5, 2
    v_lshlrev_b32 v6, 5, v6
    v_lshl_add_u32 v6, v4, 2, v6
    v_add_u32 v6, v6, v5
    v_lshrrev_b32 v7, 7, v3
    v_lshlrev_b32 v7, 11, v7
    v_lshl_add_u32 v7, v2, 9, v7
    v_lshl_add_u32 v7, v6, 2, v7
    s_mov_b32 s30, {WS_OPA:#x}""")
    for h in range(32):
        a(f"    buffer_load_dword v{16+h}, v7, s[24:27], s30 offen")
        if h < 31:
            a("    s_add_u32 s30, s30, 8192")
    a("    s_waitcnt vmcnt(0)")
    for h in range(1, 32):
        a(f"    v_add_f32 v16, v16, v{16+h}")
    a(f"""
    v_cvt_pk_bf16_f32 v16, v16, v16
    v_lshlrev_b32 v2, 10, v2
    v_add_u32 v2, v2, v3
    v_lshlrev_b32 v2, 1, v2
    buffer_store_short v16, v2, s[20:23], 0 offen
    s_endpgm
Lk4_b:
    s_sub_u32 s3, s2, 8
    s_lshl_b32 s3, s3, 6
    v_and_b32 v1, 63, v0
    v_add_u32 v1, s3, v1
    v_lshrrev_b32 v8, 6, v0
    v_lshrrev_b32 v2, 9, v1
    v_and_b32 v3, 511, v1
    v_and_b32 v4, 7, v3
    v_bfe_u32 v5, v3, 3, 2
    v_bfe_u32 v6, v3, 5, 2
    v_lshlrev_b32 v6, 5, v6
    v_lshl_add_u32 v6, v4, 2, v6
    v_add_u32 v6, v6, v5
    v_lshrrev_b32 v7, 7, v3
    v_lshl_add_u32 v6, v7, 7, v6
    v_lshlrev_b32 v7, 11, v2
    v_lshl_add_u32 v7, v6, 2, v7
    v_lshl_add_u32 v7, v8, 18, v7
    s_mov_b32 s30, {WS_OPB:#x}""")
    for k in range(32):
        a(f"    buffer_load_dword v{16+k}, v7, s[24:27], s30 offen")
        if k < 31:
            a("    s_add_u32 s30, s30, 8192")
    a("    s_waitcnt vmcnt(0)")
    for k in range(1, 32):
        a(f"    v_add_f32 v16, v16, v{16+k}")
    a(f"""
    v_lshlrev_b32 v9, 2, v0
    ds_write_b32 v9, v16
    s_waitcnt lgkmcnt(0)
    s_barrier
    v_cmp_gt_u32 vcc, 64, v0
    s_and_saveexec_b64 s[40:41], vcc
    ds_read_b32 v17, v9 offset:256
    ds_read_b32 v18, v9 offset:512
    ds_read_b32 v19, v9 offset:768
    s_waitcnt lgkmcnt(0)
    v_add_f32 v16, v16, v17
    v_add_f32 v18, v18, v19
    v_add_f32 v16, v16, v18
    v_cvt_pk_bf16_f32 v16, v16, v16
    v_lshlrev_b32 v2, 10, v2
    v_add_u32 v2, v2, v3
    v_add_u32 v2, 512, v2
    v_lshlrev_b32 v2, 1, v2
    buffer_store_short v16, v2, s[20:23], 0 offen
Lk4_end:
    s_endpgm""")
```

```python
import sys

WS_QA   = 0x0
WS_QB   = 0x10000
WS_PAO  = 0x40000
WS_PAML = 0x80000
WS_PBO  = 0x100000
WS_PBML = 0x900000
WS_OPA  = 0xA00000
WS_OPB  = 0xB00000
WS_SIZE = 0x10000000

class Asm:
    def __init__(self):
        self.lines = []
        self.uid = 0
    def __call__(self, s):
        import re
        for l in s.strip("\n").split("\n"):
            m = re.search(r"offset:(\d+)", l)
            if m:
                lim = 4096 if "buffer_" in l else 65536
                assert int(m.group(1)) < lim, l
            self.lines.append(l)
    def label(self, base):
        self.uid += 1
        return f"L{base}_{self.uid}"
    def text(self):
        return "\n".join(self.lines) + "\n"

def srd(a, dst, lo, hi, nbytes):
    a(f"""
    s_mov_b32 s{dst}, s{lo}
    s_mov_b32 s{dst+1}, s{hi}
    s_mov_b32 s{dst+2}, {nbytes:#x}
    s_mov_b32 s{dst+3}, 0x00020000""")

def vr(b, n=4):
    return f"v[{b}:{b+n-1}]"
def ar(b, n=4):
    return f"a[{b}:{b+n-1}]"

def kd(a, name, vgpr, accum, sgpr=102):
    a(f""".amdhsa_kernel {name}
  .amdhsa_next_free_vgpr {vgpr}
  .amdhsa_next_free_sgpr {sgpr}
  .amdhsa_accum_offset {accum}
  .amdhsa_group_segment_fixed_size 0
  .amdhsa_kernarg_size 112
  .amdhsa_user_sgpr_count 2
  .amdhsa_user_sgpr_kernarg_segment_ptr 1
  .amdhsa_system_sgpr_workgroup_id_x 1
.end_amdhsa_kernel""")

def pv_block(a, R, F, X, acc, slo, shi, first):
    for c in range(8):
        f = F + 4 * (c & 1)
        sel = shi if (c & 1) else slo
        for u in range(4):
            a(f"    v_perm_b32 v{f+u}, v{R+4*(2*u+1)+c//2}, v{R+4*(2*u)+c//2}, s{sel}")
        a("    s_nop 1")
        cc = "0" if first else vr(acc + 4 * c)
        a(f"    v_mfma_f32_16x16x32_bf16 {vr(acc+4*c)}, {vr(f)}, {vr(X)}, {cc}")

def k1(a):
    a("""
.p2align 8
.type k1_kernel,@function
k1_kernel:
    s_cmp_ge_u32 s2, 64
    s_cbranch_scc1 Lk1_end
    s_and_b32 s3, s2, 31
    s_lshr_b32 s28, s2, 5
    s_load_dwordx2 s[10:11], s[0:1], 104
    s_load_dwordx2 s[8:9], s[0:1], 64
    s_cmp_eq_u32 s28, 0
    s_cbranch_scc1 Lk1_a
    s_load_dwordx2 s[4:5], s[0:1], 40
    s_load_dwordx2 s[6:7], s[0:1], 56
    s_branch Lk1_go
Lk1_a:
    s_load_dwordx2 s[4:5], s[0:1], 0
    s_load_dwordx2 s[6:7], s[0:1], 24
Lk1_go:
    v_and_b32 v1, 63, v0
    v_lshrrev_b32 v2, 4, v1
    v_and_b32 v3, 15, v1
    v_lshrrev_b32 v4, 6, v0
    s_nop 0
    v_readfirstlane_b32 s29, v4
    s_mov_b32 s30, 0x05040100
    s_mov_b32 s31, 0x07060302
    s_waitcnt lgkmcnt(0)""")
    srd(a, 12, 4, 5, 4096)
    srd(a, 16, 6, 7, 0x400000)
    srd(a, 20, 8, 9, 0x400000)
    srd(a, 24, 10, 11, WS_SIZE)
    a("""
    s_cmp_lg_u32 s2, 0
    s_cbranch_scc1 Lk1_noz
    v_mov_b32 v8, 0
    v_mov_b32 v9, 0
    v_mov_b32 v10, 0
    v_mov_b32 v11, 0
    v_lshlrev_b32 v5, 4, v0
    s_mov_b32 s34, 0xA00000
    buffer_store_dwordx4 v[8:11], v5, s[24:27], s34 offen
Lk1_noz:""")
    a("""
    v_lshlrev_b32 v5, 16, v2
    v_lshl_add_u32 v5, v3, 4, v5
    s_lshl_b32 s32, s29, 18
    s_lshl_b32 s33, s3, 8
    s_add_u32 s32, s32, s33""")
    for i in range(8):
        a(f"    s_add_u32 s34, s32, {i*8192}")
        a(f"    buffer_load_dwordx4 {vr(8+4*i)}, v5, s[16:19], s34 offen nt")
    a("""
    v_lshlrev_b32 v6, 10, v3
    v_lshl_add_u32 v6, v2, 4, v6
    s_lshl_b32 s34, s29, 6
    buffer_load_dwordx4 v[4:7], v6, s[12:15], s34 offen""")
    a("""
    s_cmp_eq_u32 s28, 0
    s_cbranch_scc1 Lk1_nou""")
    a("""
    v_lshlrev_b32 v112, 13, v3
    v_lshl_add_u32 v112, v2, 4, v112""")
    for rt in range(2):
        a(f"    s_add_u32 s34, s32, {rt*16*8192}")
        for kk in range(4):
            a(f"    buffer_load_dwordx4 {vr(40+4*(rt*4+kk))}, v112, s[20:23], s34 offen offset:{kk*64} nt")
    a("""
    s_waitcnt vmcnt(8)
    s_branch Lk1_mm
Lk1_nou:
    s_waitcnt vmcnt(0)
Lk1_mm:""")
    pv_block(a, 8, 72, 4, 80, 30, 31, True)
    a("""
    s_nop 7
    s_nop 3
    v_cmp_gt_u32 vcc, 4, v3
    s_lshl_b32 s34, s29, 11
    v_lshlrev_b32 v113, 9, v3
    v_lshl_add_u32 v113, v2, 7, v113
    v_add_u32 v113, s34, v113
    s_and_saveexec_b64 s[36:37], vcc""")
    for c in range(8):
        a(f"    ds_write_b128 v113, {vr(80+4*c)} offset:{c*16}")
    a("""
    s_mov_b64 exec, s[36:37]
    s_waitcnt lgkmcnt(0)
    s_barrier
    v_cmp_gt_u32 vcc, 512, v0
    s_and_saveexec_b64 s[36:37], vcc
    s_cbranch_execz Lk1_red_done
    v_lshlrev_b32 v114, 2, v0""")
    for w in range(16):
        a(f"    ds_read_b32 v{8+w}, v114 offset:{w*2048}")
    a("    s_waitcnt lgkmcnt(0)")
    for w in range(1, 16):
        a(f"    v_add_f32 v8, v8, v{8+w}")
    a("""
    v_cvt_pk_bf16_f32 v8, v8, v8
    v_lshrrev_b32 v9, 7, v0
    v_bfe_u32 v10, v0, 5, 2
    v_bfe_u32 v11, v0, 2, 3
    v_and_b32 v12, 3, v0
    v_lshlrev_b32 v10, 5, v10
    v_lshl_add_u32 v10, v12, 3, v10
    v_add_u32 v10, v10, v11
    s_cmp_eq_u32 s28, 0
    s_cbranch_scc0 Lk1_red_b
    v_lshlrev_b32 v9, 12, v9
    v_add_u32 v10, v10, v9
    v_lshlrev_b32 v10, 1, v10
    s_lshl_b32 s34, s3, 8
    buffer_store_short v8, v10, s[24:27], s34 offen
    s_branch Lk1_red_done
Lk1_red_b:
    v_lshlrev_b32 v9, 7, v9
    v_add_u32 v10, v10, v9
    v_lshlrev_b32 v10, 1, v10
    ds_write_b16 v10, v8 offset:32768
Lk1_red_done:
    s_mov_b64 exec, s[36:37]
    s_cmp_eq_u32 s28, 0
    s_cbranch_scc1 Lk1_end
    s_waitcnt lgkmcnt(0)
    s_barrier""")
    for r in range(16):
        a(f"    v_mov_b32 v{8+r}, 0")
    a("""
    v_cmp_gt_u32 vcc, 4, v3
    v_lshlrev_b32 v113, 8, v3
    v_lshl_add_u32 v113, v2, 4, v113
    s_and_saveexec_b64 s[36:37], vcc""")
    for kk in range(4):
        a(f"    ds_read_b128 {vr(8+4*kk)}, v113 offset:{32768+kk*64}")
    a("""
    s_mov_b64 exec, s[36:37]
    s_waitcnt lgkmcnt(0) vmcnt(0)""")
    for rt in range(2):
        for kk in range(4):
            cc = "0" if kk == 0 else vr(80+4*rt)
            a(f"    v_mfma_f32_16x16x32_bf16 {vr(80+4*rt)}, {vr(40+4*(rt*4+kk))}, {vr(8+4*kk)}, {cc}")
    a(f"""
    s_nop 7
    s_nop 3
    v_cvt_pk_bf16_f32 v88, v80, v81
    v_cvt_pk_bf16_f32 v89, v82, v83
    v_cvt_pk_bf16_f32 v90, v84, v85
    v_cvt_pk_bf16_f32 v91, v86, v87
    v_lshlrev_b32 v113, 15, v3
    v_lshl_add_u32 v113, v2, 3, v113
    s_lshl_b32 s34, s3, 10
    s_lshl_b32 s35, s29, 6
    s_add_u32 s34, s34, s35
    s_add_u32 s34, s34, {WS_QB:#x}
    v_cmp_gt_u32 vcc, 4, v3
    s_and_saveexec_b64 s[36:37], vcc
    buffer_store_dwordx2 v[88:89], v113, s[24:27], s34 offen
    buffer_store_dwordx2 v[90:91], v113, s[24:27], s34 offen offset:32
    s_mov_b64 exec, s[36:37]
Lk1_end:
    s_endpgm""")

def header(a, launches):
    a(open("concat_heads__sliding_block_cached__compressed_kv_cla__decode.s.ref").read().split("; Override launch")[0].rstrip())
    for l in launches:
        a(f"; @launch kernel={l[0]} grid=({l[1]},1,1) block=({l[2]},1,1) lds={l[3]}")
    a('.amdgcn_target "amdgcn-amd-amdhsa--gfx950"')
    a(".text")
    for l in dict.fromkeys(x[0] for x in launches):
        a(f".globl {l}")

def main(which="all"):
    a = Asm()
    import k2 as K2
    import k3 as K3
    launches = [("k1_kernel", 64, 1024, 36864), ("k2_kernel", 256, 256, 2*K2.BUF + 1024), ("k3_kernel", 256, 256, 10752)]
    header(a, launches)
    k1(a)
    K2.k2(a)
    K3.k3(a)
    a('.section .rodata,"a"')
    a(".p2align 6")
    kd(a, "k1_kernel", 128, 128)
    kd(a, "k2_kernel", 512, 256)
    kd(a, "k3_kernel", 256, 256)
    return a.text()

if __name__ == "__main__":
    out = sys.argv[1] if len(sys.argv) > 1 else "out.s"
    open(out, "w").write(main())
```
